```python
import torch

def _softmax(x, axis=-1):
    return torch.softmax(x, dim=axis)
def _gelu(x):
    return torch.nn.functional.gelu(x, approximate="tanh")
def _silu(x):
    return torch.nn.functional.silu(x)
def _sigmoid(x):
    return torch.sigmoid(x)
def _layernorm(x, axis=-1, eps=1e-5):
    m = x.mean(dim=axis, keepdim=True)
    v = x.var(dim=axis, keepdim=True, unbiased=False)
    return (x - m) / torch.sqrt(v + eps)
def _scatter_add(tgt, idx, src, axis=0):
    return tgt.clone().index_add_(axis, idx, src)
def _segment_sum(src, seg, n):
    out = torch.zeros((n,) + src.shape[1:], dtype=src.dtype)
    return out.index_add_(0, seg, src)
def _pad(x, pw):
    flat = tuple(v for pair in reversed(pw) for v in pair)
    return torch.nn.functional.pad(x, flat)

kernel_name = 'concat_heads__mha_block_cached__mha_block_cached__near_ridge'

def setup_inputs():

    _w = (lambda a: (lambda t: t.to(torch.bfloat16) if t.is_floating_point() else t)(torch.as_tensor(a)))
    def _A_setup():
        B, Sq, D = 8, 240, 640
        H, Sk, Dh = 32, 1024, 128
        return {
            "x": _w((lambda *s: torch.randn(*s, dtype=torch.bfloat16) * 0.8)(B, Sq, D)),
            "k_cache": _w((lambda *s: torch.randn(*s, dtype=torch.bfloat16) * 0.8)(B, H, Sk, Dh)),
            "v_cache": _w((lambda *s: torch.randn(*s, dtype=torch.bfloat16) * 0.05)(B, H, Sk, Dh)),
            "wq": _w((lambda *s: torch.randn(*s, dtype=torch.bfloat16) * 0.8)(D, H * Dh) * (D ** -0.5)),
            "wo": _w((lambda *s: torch.randn(*s, dtype=torch.bfloat16) * 0.05)(H * Dh, D) * ((H * Dh) ** -0.5)),
        }
    _A_in = _A_setup()

    def _B_setup():
        B, Sq, D = 8, 240, 640
        H, Sk, Dh = 32, 1024, 128
        return {
            "x": _w((lambda *s: torch.randn(*s, dtype=torch.bfloat16) * 0.8)(B, Sq, D)),
            "k_cache": _w((lambda *s: torch.randn(*s, dtype=torch.bfloat16) * 0.8)(B, H, Sk, Dh)),
            "v_cache": _w((lambda *s: torch.randn(*s, dtype=torch.bfloat16) * 0.05)(B, H, Sk, Dh)),
            "wq": _w((lambda *s: torch.randn(*s, dtype=torch.bfloat16) * 0.8)(D, H * Dh) * (D ** -0.5)),
            "wo": _w((lambda *s: torch.randn(*s, dtype=torch.bfloat16) * 0.05)(H * Dh, D) * ((H * Dh) ** -0.5)),
        }
    _B_in = _B_setup()

    return {
        "A_x": _A_in["x"],
        "A_k_cache": _A_in["k_cache"],
        "A_v_cache": _A_in["v_cache"],
        "A_wq": _A_in["wq"],
        "A_wo": _A_in["wo"],
        "B_x": _B_in["x"],
        "B_k_cache": _B_in["k_cache"],
        "B_v_cache": _B_in["v_cache"],
        "B_wq": _B_in["wq"],
        "B_wo": _B_in["wo"],
    }

def reference(A_x, A_k_cache, A_v_cache, A_wq, A_wo, B_x, B_k_cache, B_v_cache, B_wq, B_wo):
    def _A_ref(x, k_cache, v_cache, wq, wo):
        B, Sq, D = x.shape
        H, Dh = 32, 128
        q = (lambda x, *d: x.permute(*d))((x @ wq).reshape(B, Sq, H, Dh), 0, 2, 1, 3)
        scores = torch.einsum("bhqd,bhkd->bhqk", q, k_cache) * (Dh ** -0.5)
        p = _softmax(scores, axis=-1)
        o = torch.einsum("bhqk,bhkd->bhqd", p, v_cache)
        return (lambda x, *d: x.permute(*d))(o, 0, 2, 1, 3).reshape(B, Sq, H * Dh) @ wo

    def _B_ref(x, k_cache, v_cache, wq, wo):
        B, Sq, D = x.shape
        H, Dh = 32, 128
        q = (lambda x, *d: x.permute(*d))((x @ wq).reshape(B, Sq, H, Dh), 0, 2, 1, 3)
        scores = torch.einsum("bhqd,bhkd->bhqk", q, k_cache) * (Dh ** -0.5)
        p = _softmax(scores, axis=-1)
        o = torch.einsum("bhqk,bhkd->bhqd", p, v_cache)
        return (lambda x, *d: x.permute(*d))(o, 0, 2, 1, 3).reshape(B, Sq, H * Dh) @ wo

    a = _A_ref(A_x, A_k_cache, A_v_cache, A_wq, A_wo)
    b = _B_ref(B_x, B_k_cache, B_v_cache, B_wq, B_wo)
    return torch.concatenate([a, b], axis=-1)
```

```python
import re

_VR = re.compile(r'\bv\[(\d+):(\d+)\]|\bv(\d+)\b')
_AR = re.compile(r'\ba\[(\d+):(\d+)\]|\ba(\d+)\b')
_SR = re.compile(r'\bs\[(\d+):(\d+)\]|\bs(\d+)\b')
TRANS = ('v_exp_f32', 'v_log_f32', 'v_rcp_f32', 'v_rsq_f32', 'v_sqrt_f32', 'v_sin_f32', 'v_cos_f32', 'v_rcp_iflag_f32')

def _regs(tok, rx):
    out = []
    for m in rx.finditer(tok):
        if m.group(1) is not None:
            out += list(range(int(m.group(1)), int(m.group(2)) + 1))
        else:
            out.append(int(m.group(3)))
    return out

def split_ops(text):
    t = text.strip()
    sp = t.find(' ')
    if sp < 0:
        return t, []
    mn = t[:sp]; rest = t[sp + 1:]
    ops = [o.strip() for o in rest.split(',')]
    return mn, ops

class Ins:
    __slots__ = ('text', 'mn', 'ops', 'kind', 'vdst', 'vsrc', 'passes', 'sdst', 'ssrc', 'm0w', 'm0r', 'cmt')
    def __init__(self, text):
        self.text = text
        code = text.split(';')[0].strip()
        self.mn, self.ops = split_ops(code)
        mn = self.mn; ops = self.ops
        self.vdst = []; self.vsrc = []; self.passes = 0; self.sdst = []; self.ssrc = []
        self.m0w = False; self.m0r = False
        V = lambda o: _regs(o, _VR)
        if mn.startswith('v_mfma'):
            self.kind = 'mfma'
            self.passes = 8 if '32x32x16' in mn or '32x32x8' in mn else 4
            self.vdst = V(ops[0]); self.vsrc = [V(ops[1]), V(ops[2]), V(ops[3])]
        elif mn.startswith('v_cmp') or mn.startswith('v_readfirstlane') or mn.startswith('v_readlane'):
            self.kind = 'valu'
            self.vsrc = sum((V(o) for o in ops[1:]), [])
            self.sdst = ['vcc'] if ops[0] == 'vcc' else _regs(ops[0], _SR)
        elif mn.startswith('v_permlane'):
            self.kind = 'perm'
            self.vdst = V(ops[0]) + V(ops[1]); self.vsrc = V(ops[0]) + V(ops[1])
        elif mn.startswith('v_'):
            self.kind = 'trans' if mn.replace('_e32', '').replace('_e64', '') in TRANS else 'valu'
            self.vdst = V(ops[0]); self.vsrc = sum((V(o) for o in ops[1:]), [])
            for o in ops[1:]:
                self.ssrc += _regs(o, _SR)
                if 'vcc' in o: self.ssrc.append('vcc')
        elif mn.startswith('ds_read'):
            self.kind = 'ds'
            self.vdst = V(ops[0]); self.vsrc = V(ops[1]) if len(ops) > 1 else []
        elif mn.startswith('ds_write') or mn.startswith('ds_'):
            self.kind = 'ds'
            self.vsrc = sum((V(o) for o in ops), [])
        elif mn.startswith('buffer_load') or mn.startswith('global_load'):
            self.kind = 'vmem'
            if 'lds' in code.split()[-1:] or ' lds' in code:
                self.vsrc = V(ops[0]); self.m0r = True
            else:
                self.vdst = V(ops[0]); self.vsrc = V(ops[1])
            for o in ops: self.ssrc += _regs(o, _SR)
        elif mn.startswith('buffer_store') or mn.startswith('global_store') or mn.startswith('buffer_atomic') or mn.startswith('global_atomic'):
            self.kind = 'vmem'
            self.vsrc = sum((V(o) for o in ops), [])
            for o in ops: self.ssrc += _regs(o, _SR)
        elif mn.startswith('s_'):
            self.kind = 'salu'
            if mn == 's_nop':
                self.kind = 'nop'
            if ops and ops[0] == 'm0': self.m0w = True
        else:
            self.kind = 'other'

    def states(self):
        if self.kind == 'nop':
            return int(self.ops[0], 0) + 1
        return 1

class Asm:
    def __init__(self):
        self.items = []
    def __call__(self, text):
        for line in text.strip('\n').split('\n'):
            s = line.strip()
            if not s:
                continue
            if s.startswith(';') or s.startswith('.'):
                self.items.append(('raw', s))
            elif s.endswith(':'):
                self.items.append(('label', s[:-1]))
            else:
                self.items.append(('ins', Ins(s)))
    def raw(self, text):
        self.items.append(('raw', text))
    def label(self, name):
        self.items.append(('label', name))

    def finalize(self):
        out = []
        pos = 0
        mfma_w = {}
        valu_w = {}
        trans_w = {}
        srcc_r = {}
        st_r = {}
        sgpr_w = {}
        m0_w = [-100]
        nops_added = 0
        def need_for(ins):
            req = pos
            k = ins.kind
            allv = list(ins.vdst) + (sum(ins.vsrc, []) if ins.vsrc and isinstance(ins.vsrc[0], list) else list(ins.vsrc))
            if k == 'mfma':
                A, B, C = ins.vsrc
                for r in A + B:
                    if r in mfma_w:
                        p, n, rng = mfma_w[r]; req = max(req, p + {2:5,4:8,8:12,16:20}[n])
                    if r in valu_w: req = max(req, valu_w[r] + 2)
                for r in C:
                    if r in mfma_w:
                        p, n, rng = mfma_w[r]
                        if tuple(C) == rng and n == ins.passes: pass
                        else: req = max(req, p + {2:4,4:6,8:10,16:18}[n])
                    if r in valu_w: req = max(req, valu_w[r] + 2)
                for r in ins.vdst:
                    if r in mfma_w and r not in C:
                        p, n, rng = mfma_w[r]; req = max(req, p + {2:4,4:6,8:10,16:18}[n])
            else:
                for r in allv:
                    if r in mfma_w:
                        p, n, rng = mfma_w[r]; req = max(req, p + {2:5,4:8,8:12,16:20}[n])
                if k in ('valu', 'trans', 'perm'):
                    for r in ins.vdst:
                        if r in srcc_r:
                            p, n = srcc_r[r]; req = max(req, p + {2:1,4:3,8:7,16:15}[n])
                        if r in st_r: req = max(req, st_r[r] + 2)
                    if k != 'trans':
                        for r in allv:
                            if r in trans_w: req = max(req, trans_w[r] + 1)
                    else:
                        for r in ins.vsrc:
                            if r in trans_w: req = max(req, trans_w[r] + 1)
                    for s in ins.ssrc:
                        if s in sgpr_w: req = max(req, sgpr_w[s] + 2)
                    if ins.mn.startswith('v_readfirstlane') or ins.mn.startswith('v_readlane'):
                        for r in ins.vsrc:
                            if r in valu_w: req = max(req, valu_w[r] + 1)
                if k == 'perm':
                    for r in allv:
                        if r in valu_w: req = max(req, valu_w[r] + 2)
                if k in ('vmem', 'ds'):
                    for r in ins.vdst:
                        if r in st_r: req = max(req, st_r[r] + 1)
                if k == 'vmem':
                    for s in ins.ssrc:
                        if s in sgpr_w: req = max(req, sgpr_w[s] + 5)
                    if ins.m0r: req = max(req, m0_w[0] + 1)
            return req
        def flush():
            nonlocal pos
            req = pos
            for r, (p, n, rng) in mfma_w.items(): req = max(req, p + {2:5,4:8,8:12,16:20}[n])
            for r, p in valu_w.items(): req = max(req, p + 2)
            for r, (p, n) in srcc_r.items(): req = max(req, p + {2:1,4:3,8:7,16:15}[n])
            for s, p in sgpr_w.items(): req = max(req, p + 5)
            emit_nops(req - pos)
        def emit_nops(n):
            nonlocal pos, nops_added
            while n > 0:
                k = min(n, 16)
                out.append(f'    s_nop {k-1}')
                pos += k; n -= k; nops_added += 1
        for kind, it in self.items:
            if kind == 'raw':
                out.append(it); continue
            if kind == 'label':
                flush()
                out.append(it + ':'); continue
            ins = it
            isbr = ins.mn.startswith('s_cbranch') or ins.mn == 's_branch' or ins.mn == 's_endpgm'
            if isbr:
                flush()
            req = need_for(ins)
            if req > pos: emit_nops(req - pos)
            out.append('    ' + ins.text)
            pos += ins.states()
            p = pos
            k = ins.kind
            if k == 'mfma':
                for r in ins.vdst:
                    mfma_w[r] = (p, ins.passes, tuple(ins.vdst)); valu_w.pop(r, None); trans_w.pop(r, None)
                for r in ins.vsrc[2]:
                    srcc_r[r] = (p, ins.passes)
            elif k in ('valu', 'trans', 'perm'):
                for r in ins.vdst:
                    valu_w[r] = p; mfma_w.pop(r, None)
                    if k == 'trans': trans_w[r] = p
                    else: trans_w.pop(r, None)
                for s in ins.sdst: sgpr_w[s] = p
            elif k in ('ds', 'vmem'):
                for r in ins.vdst:
                    mfma_w.pop(r, None); valu_w.pop(r, None); trans_w.pop(r, None)
                if k == 'vmem' and ins.mn.startswith('buffer_store') and ('x4' in ins.mn or 'x3' in ins.mn):
                    for r in _regs(ins.ops[0], _VR): st_r[r] = p
            if ins.m0w: m0_w[0] = p
            if len(valu_w) > 600: valu_w.clear()
        self.nops_added = nops_added
        return '\n'.join(out) + '\n'
```

```python
import sys, math
sys.path.insert(0, 'gen')
from asmlib import Asm

QB = 2*8*240*4096*2
OB = QB
PBASE = QB + OB
C_LOG2E_SCALE = (128 ** -0.5) * math.log2(math.e)

def f32hex(x):
    import struct
    return '0x%08x' % struct.unpack('<I', struct.pack('<f', x))[0]

def kernel_header(a, name):
    a.raw(f'.globl {name}')
    a.raw('.p2align 8')
    a.raw(f'.type {name},@function')
    a.label(name)

def kernel_desc(name, vgprs, lds=0):
    acc = ((vgprs + 3)//4)*4
    return f'''.amdhsa_kernel {name}
  .amdhsa_next_free_vgpr {vgprs}
  .amdhsa_next_free_sgpr 102
  .amdhsa_accum_offset {acc}
  .amdhsa_group_segment_fixed_size 0
  .amdhsa_kernarg_size 104
  .amdhsa_user_sgpr_count 2
  .amdhsa_user_sgpr_kernarg_segment_ptr 1
  .amdhsa_system_sgpr_workgroup_id_x 1
.end_amdhsa_kernel
'''

def gemm_kernel(a, name, cfg):
    WM, WN, WVM, WVN = cfg['WM'], cfg['WN'], cfg['waves_m'], cfg['waves_n']
    assert WVM*WVN == 8 and WVM*WM*32 == 256
    BN = 32*WN*WVN
    BK = 64
    NK = cfg['NK']
    S = cfg['stages']
    ldx, ldw, ldo = cfg['ldx'], cfg['ldw'], cfg['ldo']
    out_f32 = cfg['out_f32']
    RB = BN*2
    swz = (RB % 256 == 0)
    XB = 256*BK*2
    NX = XB//1024//8
    NW = -(-(BK*RB)//(1024*8))
    WBP = NW*8*1024
    STAGE = XB + WBP
    L = NX + NW
    lds_total = S*STAGE
    ACC = 16
    nacc = 16*WM*WN
    FB0 = ACC + nacc
    fsz = 4*WM + 4*WN
    FB1 = FB0 + fsz
    XA = FB1 + fsz
    WA = XA + 4*S
    XV = WA + WN*S
    WV = XV + NX
    OV = WV + NW
    T = OV + WM
    nv = T + 12
    assert nv <= 256, nv
    def acc(mt, nt): b = ACC + 16*(mt*WN + nt); return f'v[{b}:{b+15}]'
    def bfr(s, mt): b = (FB0, FB1)[s] + 4*mt; return b
    def afr(s, nt): b = (FB0, FB1)[s] + 4*WM + 4*nt; return b

    kernel_header(a, name)
    a(f's_cmp_ge_u32 s2, {cfg["grid"]}')
    a(f's_cbranch_scc1 {name}_exit')
    cfg['setup'](a)
    a('v_and_b32 v1, 63, v0')
    a('v_lshrrev_b32 v2, 6, v0')
    a('v_readfirstlane_b32 s24, v2')
    a(f's_lshr_b32 s25, s24, {int(math.log2(WVN))}')
    a(f's_and_b32 s26, s24, {WVN-1}')
    t0, t1, t2 = T, T+1, T+2
    for j in range(NX):
        a(f's_mul_i32 s27, s24, {NX*8}')
        a(f'v_lshrrev_b32 v{t0}, 3, v1')
        a(f'v_add_u32 v{t0}, s27, v{t0}')
        a(f'v_add_u32 v{t0}, {8*j}, v{t0}')
        a(f'v_lshrrev_b32 v{t1}, 1, v{t0}')
        a(f'v_xor_b32 v{t1}, v{t1}, v1')
        a(f'v_and_b32 v{t1}, 7, v{t1}')
        a(f'v_min_u32 v{t0}, 239, v{t0}')
        a(f's_movk_i32 s27, {ldx}') if ldx < 32768 else a(f's_mov_b32 s27, {ldx}')
        a(f'v_mul_lo_u32 v{t0}, v{t0}, s27')
        a(f'v_lshlrev_b32 v{t1}, 4, v{t1}')
        a(f'v_add_u32 v{XV+j}, v{t0}, v{t1}')
    for j in range(NW):
        a(f's_mul_i32 s27, s24, {NW*1024}')
        a(f'v_lshlrev_b32 v{t0}, 4, v1')
        a(f'v_add_u32 v{t0}, s27, v{t0}')
        a(f'v_add_u32 v{t0}, {1024*j}, v{t0}')
        if RB & (RB-1) == 0:
            sh = int(math.log2(RB))
            a(f'v_lshrrev_b32 v{t1}, {sh}, v{t0}')
            a(f'v_and_b32 v{t2}, {RB-1}, v{t0}')
        else:
            assert RB == 320
            a('s_mov_b32 s27, 52429')
            a(f'v_mul_lo_u32 v{t1}, v{t0}, s27')
            a(f'v_lshrrev_b32 v{t1}, 24, v{t1}')
            a(f's_movk_i32 s27, {RB}')
            a(f'v_mul_lo_u32 v{t2}, v{t1}, s27')
            a(f'v_sub_u32 v{t2}, v{t0}, v{t2}')
        if swz:
            a(f'v_and_b32 v{t0}, 3, v{t1}')
            a(f'v_lshlrev_b32 v{t0}, 6, v{t0}')
            a(f'v_xor_b32 v{t2}, v{t2}, v{t0}')
        a(f'v_min_u32 v{t1}, {BK-1}, v{t1}')
        a(f's_movk_i32 s27, {ldw}')
        a(f'v_mul_lo_u32 v{t1}, v{t1}, s27')
        a(f'v_add_u32 v{WV+j}, v{t1}, v{t2}')
    a(f'v_and_b32 v{t0}, 31, v1')
    a(f's_mul_i32 s27, s25, {WM*32}')
    a(f'v_add_u32 v{t0}, s27, v{t0}')
    a(f'v_lshrrev_b32 v{t1}, 1, v{t0}')
    a(f'v_and_b32 v{t1}, 7, v{t1}')
    a(f'v_lshrrev_b32 v{t2}, 5, v1')
    a(f'v_xor_b32 v{t1}, v{t1}, v{t2}')
    a(f'v_lshlrev_b32 v{t0}, 7, v{t0}')
    for ks in range(4):
        a(f'v_xor_b32 v{t2}, {2*ks}, v{t1}')
        a(f'v_lshlrev_b32 v{t2}, 4, v{t2}')
        a(f'v_add_u32 v{XA+ks}, v{t0}, v{t2}')
        for st in range(1, S):
            a(f'v_add_u32 v{XA+4*st+ks}, {st*STAGE}, v{XA+ks}')
    a(f'v_lshrrev_b32 v{t0}, 2, v1')
    a(f'v_and_b32 v{t0}, 3, v{t0}')
    a(f'v_lshrrev_b32 v{t1}, 5, v1')
    a(f'v_lshlrev_b32 v{t1}, 3, v{t1}')
    a(f'v_add_u32 v{t1}, v{t1}, v{t0}')
    a(f's_movk_i32 s27, {RB}')
    a(f'v_mul_lo_u32 v{t1}, v{t1}, s27')
    a(f'v_add_u32 v{t1}, {XB}, v{t1}')
    a(f'v_lshrrev_b32 v{t2}, 4, v1')
    a(f'v_and_b32 v{t2}, 1, v{t2}')
    a(f'v_lshlrev_b32 v{t2}, 5, v{t2}')
    a(f'v_add_u32 v{t1}, v{t1}, v{t2}')
    a(f'v_and_b32 v{t2}, 3, v1')
    a(f'v_lshlrev_b32 v{t2}, 3, v{t2}')
    a(f'v_add_u32 v{t1}, v{t1}, v{t2}')
    a(f's_mul_i32 s27, s26, {WN}')
    for nt in range(WN):
        a(f's_add_u32 s28, s27, {nt}')
        if swz:
            a(f'v_xor_b32 v{t2}, s28, v{t0}')
        else:
            a(f'v_mov_b32 v{t2}, s28')
        a(f'v_lshlrev_b32 v{t2}, 6, v{t2}')
        a(f'v_add_u32 v{WA+nt}, v{t1}, v{t2}')
        for st in range(1, S):
            a(f'v_add_u32 v{WA+WN*st+nt}, {st*STAGE}, v{WA+nt}')
    for mt in range(WM):
        a(f'v_and_b32 v{t0}, 31, v1')
        a(f's_mul_i32 s27, s25, {WM*32}')
        a(f's_add_u32 s27, s27, {32*mt}')
        a(f'v_add_u32 v{t0}, s27, v{t0}')
        a(f's_mov_b32 s27, {ldo}')
        a(f'v_mul_lo_u32 v{t1}, v{t0}, s27')
        a(f'v_cmp_gt_u32 vcc, 240, v{t0}')
        a(f'v_mov_b32 v{t2}, 0x80000000')
        a(f'v_cndmask_b32 v{OV+mt}, v{t2}, v{t1}, vcc')
    for i in range(nacc):
        a(f'v_mov_b32 v{ACC+i}, 0')
    a(f's_mul_i32 s29, s24, {NX*1024}')
    a(f's_mul_i32 s30, s24, {NW*1024}')
    a(f's_add_u32 s30, s30, {XB}')
    a('s_mov_b32 s31, 0')
    a('s_mov_b32 s32, 0')
    def issue(stage_idx):
        sb = (stage_idx % S)*STAGE
        for j in range(NX):
            a(f's_add_u32 m0, s29, {sb + 1024*j}')
            a(f'buffer_load_dwordx4 v{XV+j}, s[12:15], s31 offen lds')
        for j in range(NW):
            a(f's_add_u32 m0, s30, {sb + 1024*j}')
            a(f'buffer_load_dwordx4 v{WV+j}, s[16:19], s32 offen lds')
        a(f's_add_u32 s31, s31, {BK*2}')
        a(f's_add_u32 s32, s32, {BK*ldw}')
    for st in range(min(S-1, NK)):
        issue(st)
    def load_frags(s, sb, ks):
        for mt in range(WM):
            b = bfr(s, mt)
            a(f'ds_read_b128 v[{b}:{b+3}], v{XA+4*sb+ks} offset:{mt*32*128}')
        for nt in range(WN):
            b = afr(s, nt)
            for jj in range(2):
                a(f'ds_read_b64_tr_b16 v[{b+2*jj}:{b+2*jj+1}], v{WA+WN*sb+nt} offset:{(16*ks + 4*jj)*RB}')
    nfl = WM + 2*WN
    for it in range(NK):
        infl = min(S-2, NK-1-it)
        a(f's_waitcnt vmcnt({infl*L})')
        a('s_barrier')
        if it + S - 1 < NK:
            issue(it + S - 1)
        sb = it % S
        load_frags(0, sb, 0)
        for ks in range(4):
            s = ks & 1
            if ks + 1 < 4:
                load_frags(s ^ 1, sb, ks + 1)
                a(f's_waitcnt lgkmcnt({nfl})')
            else:
                a('s_waitcnt lgkmcnt(0)')
            for mt in range(WM):
                for nt in range(WN):
                    fa = afr(s, nt); fb = bfr(s, mt)
                    a(f'v_mfma_f32_32x32x16_bf16 {acc(mt,nt)}, v[{fa}:{fa+3}], v[{fb}:{fb+3}], {acc(mt,nt)}')
    a(f's_mul_i32 s27, s26, {WN*32*(4 if out_f32 else 2)}')
    a(f'v_lshrrev_b32 v{t0}, 5, v1')
    a(f'v_lshlrev_b32 v{t0}, {4 if out_f32 else 3}, v{t0}')
    a(f'v_add_u32 v{t0}, s27, v{t0}')
    for mt in range(WM):
        a(f'v_add_u32 v{t1}, v{OV+mt}, v{t0}')
        for nt in range(WN):
            b = ACC + 16*(mt*WN + nt)
            for g in range(4):
                off = (32*nt + 8*g)*(4 if out_f32 else 2)
                if out_f32:
                    a(f'buffer_store_dwordx4 v[{b+4*g}:{b+4*g+3}], v{t1}, s[20:23], 0 offen offset:{off}')
                else:
                    a(f'v_cvt_pk_bf16_f32 v{b+4*g}, v{b+4*g}, v{b+4*g+1}')
                    a(f'v_cvt_pk_bf16_f32 v{b+4*g+1}, v{b+4*g+2}, v{b+4*g+3}')
                    a(f'buffer_store_dwordx2 v[{b+4*g}:{b+4*g+1}], v{t1}, s[20:23], 0 offen offset:{off}')
    a('s_waitcnt vmcnt(0)')
    a.label(f'{name}_exit')
    a('s_endpgm')
    return nv, lds_total

def sel_ptr(a, dst, offA, offB, cond_sgpr):
    a(f's_load_dwordx2 s[{dst}:{dst+1}], s[0:1], {offA}')
    a(f's_load_dwordx2 s[40:41], s[0:1], {offB}')
    a('s_waitcnt lgkmcnt(0)')
    a(f's_cmp_lg_u32 {cond_sgpr}, 0')
    a(f's_cselect_b32 s{dst}, s40, s{dst}')
    a(f's_cselect_b32 s{dst+1}, s41, s{dst+1}')

def srd(a, d, base, add_sgpr_or_imm, nrec):
    a(f's_add_u32 s{d}, s{base}, {add_sgpr_or_imm}')
    a(f's_addc_u32 s{d+1}, s{base+1}, 0')
    a(f's_mov_b32 s{d+2}, {nrec}')
    a(f's_mov_b32 s{d+3}, 0x00020000')

def gemm1_setup(a):
    a('s_lshr_b32 s33, s2, 7')
    a('s_lshr_b32 s34, s2, 4')
    a('s_and_b32 s34, s34, 7')
    a('s_and_b32 s35, s2, 15')
    sel_ptr(a, 4, 0, 40, 's33')
    sel_ptr(a, 6, 24, 64, 's33')
    a('s_load_dwordx2 s[8:9], s[0:1], 96')
    a('s_waitcnt lgkmcnt(0)')
    a('s_mul_i32 s36, s34, 307200')
    srd(a, 12, 4, 's36', 307200)
    a('s_lshl_b32 s36, s35, 9')
    srd(a, 16, 6, 's36', 640*8192 - 15*512)
    a('s_lshl_b32 s36, s33, 3')
    a('s_add_u32 s36, s36, s34')
    a(f's_mul_i32 s36, s36, {240*8192}')
    a('s_lshl_b32 s37, s35, 9')
    a('s_add_u32 s36, s36, s37')
    srd(a, 20, 8, 's36', 240*8192 - 15*512)

def gemm3_setup(a):
    a('s_lshr_b32 s33, s2, 7')
    a('s_lshr_b32 s34, s2, 4')
    a('s_and_b32 s34, s34, 7')
    a('s_lshr_b32 s35, s2, 2')
    a('s_and_b32 s35, s35, 3')
    a('s_and_b32 s38, s2, 3')
    sel_ptr(a, 6, 32, 72, 's33')
    a('s_load_dwordx2 s[8:9], s[0:1], 96')
    a('s_waitcnt lgkmcnt(0)')
    a('s_lshl_b32 s36, s33, 3')
    a('s_add_u32 s36, s36, s34')
    a(f's_mul_i32 s37, s36, {240*8192}')
    a(f's_add_u32 s37, s37, {QB}')
    a('s_lshl_b32 s39, s38, 11')
    a('s_add_u32 s37, s37, s39')
    srd(a, 12, 8, 's37', 240*8192 - 3*2048)
    a(f's_mul_i32 s37, s38, {1024*1280}')
    a('s_mul_i32 s39, s35, 320')
    a('s_add_u32 s37, s37, s39')
    srd(a, 16, 6, 's37', 4096*1280 - 3*1024*1280 - 3*320)
    a('s_lshl_b32 s37, s38, 4')
    a('s_add_u32 s37, s37, s36')
    a(f's_mul_i32 s37, s37, {240*2560}')
    a(f's_add_u32 s37, s37, {PBASE}')
    a('s_mul_i32 s39, s35, 640')
    a('s_add_u32 s37, s37, s39')
    srd(a, 20, 8, 's37', 240*2560 - 3*640)

def reduce_kernel(a, name):
    kernel_header(a, name)
    a('s_cmp_ge_u32 s2, 1200')
    a(f's_cbranch_scc1 {name}_exit')
    a('s_load_dwordx2 s[4:5], s[0:1], 96')
    a('s_load_dwordx2 s[6:7], s[0:1], 80')
    a('s_waitcnt lgkmcnt(0)')
    srd(a, 8, 4, PBASE, 4*2*1920*2560)
    srd(a, 12, 6, 0, 1920*2560)
    a('s_lshl_b32 s3, s2, 8')
    a('v_add_u32 v1, s3, v0')
    a('v_lshlrev_b32 v2, 5, v1')
    for ks in range(4):
        a(f's_mov_b32 s16, {ks*2*1920*2560}')
        a(f'buffer_load_dwordx4 v[{8+8*ks}:{11+8*ks}], v2, s[8:11], s16 offen')
        a(f'buffer_load_dwordx4 v[{12+8*ks}:{15+8*ks}], v2, s[8:11], s16 offen offset:16')
    a('v_cmp_le_u32 vcc, 153600, v1')
    a('v_cndmask_b32 v3, 0, 1, vcc')
    a('s_mov_b32 s16, 153600')
    a('v_mul_lo_u32 v4, v3, s16')
    a('v_sub_u32 v4, v1, v4')
    a('s_mov_b32 s16, 52429')
    a('v_lshrrev_b32 v5, 4, v4')
    a('v_mul_lo_u32 v5, v5, s16')
    a('v_lshrrev_b32 v5, 18, v5')
    a('v_mul_u32_u24 v6, 80, v5')
    a('v_sub_u32 v6, v4, v6')
    a('v_mul_u32_u24 v5, 2560, v5')
    a('v_lshlrev_b32 v6, 4, v6')
    a('v_add_u32 v5, v5, v6')
    a('v_mul_u32_u24 v3, 1280, v3')
    a('v_add_u32 v5, v5, v3')
    a('s_waitcnt vmcnt(0)')
    for i in range(8):
        a(f'v_add_f32 v{8+i}, v{8+i}, v{16+i}')
        a(f'v_add_f32 v{24+i}, v{24+i}, v{32+i}')
        a(f'v_add_f32 v{8+i}, v{8+i}, v{24+i}')
    for i in range(4):
        a(f'v_cvt_pk_bf16_f32 v{40+i}, v{8+2*i}, v{9+2*i}')
    a('buffer_store_dwordx4 v[40:43], v5, s[12:15], 0 offen')
    a('s_waitcnt vmcnt(0)')
    a.label(f'{name}_exit')
    a('s_endpgm')
    return 48

def attn_kernel(a, name):
    QF = 8; OA = 40; SR = 104; PP = 136; KF = 152; VF = 168; KA = 184; VA = 192
    DK0, DK1, DV = 196, 197, 198
    M, Lr, T0 = 200, 201, 202
    t0, t1, t2, t3 = T0, T0+1, T0+2, T0+3
    MC, AL = 208, 209
    ROWO = 210
    NT = 16
    kernel_header(a, name)
    a('s_cmp_ge_u32 s2, 512')
    a(f's_cbranch_scc1 {name}_exit')
    a('s_lshr_b32 s33, s2, 8')
    a('s_lshr_b32 s34, s2, 5')
    a('s_and_b32 s34, s34, 7')
    a('s_and_b32 s35, s2, 31')
    sel_ptr(a, 4, 8, 48, 's33')
    sel_ptr(a, 6, 16, 56, 's33')
    a('s_load_dwordx2 s[8:9], s[0:1], 96')
    a('s_waitcnt lgkmcnt(0)')
    a('s_lshl_b32 s36, s34, 5')
    a('s_add_u32 s36, s36, s35')
    a('s_lshl_b32 s36, s36, 18')
    srd(a, 12, 4, 's36', 262144)
    srd(a, 16, 6, 's36', 262144)
    a('s_lshl_b32 s36, s33, 3')
    a('s_add_u32 s36, s36, s34')
    a(f's_mul_i32 s36, s36, {240*8192}')
    a('s_lshl_b32 s37, s35, 8')
    a('s_add_u32 s36, s36, s37')
    srd(a, 20, 8, 's36', 240*8192 - 31*256)
    a(f's_add_u32 s36, s36, {QB}')
    srd(a, 24, 8, 's36', 240*8192 - 31*256)
    a('v_and_b32 v1, 63, v0')
    a('v_lshrrev_b32 v2, 6, v0')
    a('v_readfirstlane_b32 s28, v2')
    a('s_lshl_b32 s29, s28, 5')
    a(f'v_and_b32 v{t0}, 31, v1')
    a(f'v_add_u32 v{t0}, s29, v{t0}')
    a(f'v_cmp_gt_u32 vcc, 240, v{t0}')
    a(f'v_lshlrev_b32 v{t1}, 13, v{t0}')
    a(f'v_mov_b32 v{t2}, 0x80000000')
    a(f'v_cndmask_b32 v{ROWO}, v{t2}, v{t1}, vcc')
    a(f'v_min_u32 v{t0}, 239, v{t0}')
    a(f'v_lshlrev_b32 v{t0}, 13, v{t0}')
    a(f'v_lshrrev_b32 v{t1}, 5, v1')
    a(f'v_lshlrev_b32 v{t1}, 4, v{t1}')
    a(f'v_add_u32 v{t0}, v{t0}, v{t1}')
    for ks in range(8):
        a(f'buffer_load_dwordx4 v[{QF+4*ks}:{QF+4*ks+3}], v{t0}, s[20:23], 0 offen offset:{32*ks}')
    a(f'v_lshrrev_b32 v{t0}, 4, v1')
    a('s_lshl_b32 s29, s28, 3')
    a(f'v_add_u32 v{t1}, s29, v{t0}')
    for j, d in ((0, DK0), (1, DK1)):
        a(f'v_add_u32 v{t2}, {4*j}, v{t1}')
        a(f'v_xor_b32 v{t2}, v{t2}, v1')
        a(f'v_and_b32 v{t2}, 15, v{t2}')
        a(f'v_lshlrev_b32 v{t2}, 4, v{t2}')
        a(f'v_lshlrev_b32 v{t3}, 8, v{t1}')
        a(f'v_add_u32 v{d}, v{t3}, v{t2}')
    a(f'v_lshrrev_b32 v{t2}, 2, v1')
    a(f'v_xor_b32 v{t2}, v{t2}, v{t0}')
    a(f'v_and_b32 v{t2}, 3, v{t2}')
    a(f'v_lshlrev_b32 v{t2}, 6, v{t2}')
    a(f'v_and_b32 v{t3}, 3, v1')
    a(f'v_lshlrev_b32 v{t3}, 4, v{t3}')
    a(f'v_add_u32 v{t2}, v{t2}, v{t3}')
    a(f'v_lshlrev_b32 v{t3}, 8, v{t1}')
    a(f'v_add_u32 v{DV}, v{t3}, v{t2}')
    a(f'v_and_b32 v{t0}, 31, v1')
    a(f'v_lshlrev_b32 v{t0}, 8, v{t0}')
    a(f'v_lshrrev_b32 v{t1}, 5, v1')
    a(f'v_and_b32 v{t2}, 15, v1')
    a(f'v_xor_b32 v{t1}, v{t1}, v{t2}')
    for ks in range(8):
        a(f'v_xor_b32 v{t2}, {2*ks}, v{t1}')
        a(f'v_lshlrev_b32 v{t2}, 4, v{t2}')
        a(f'v_add_u32 v{KA+ks}, v{t0}, v{t2}')
    a(f'v_lshrrev_b32 v{t0}, 2, v1')
    a(f'v_and_b32 v{t0}, 3, v{t0}')
    a(f'v_lshrrev_b32 v{t1}, 5, v1')
    a(f'v_lshlrev_b32 v{t1}, 2, v{t1}')
    a(f'v_add_u32 v{t1}, v{t1}, v{t0}')
    a(f'v_lshlrev_b32 v{t1}, 8, v{t1}')
    a(f'v_add_u32 v{t1}, 0x10000, v{t1}')
    a(f'v_lshrrev_b32 v{t2}, 4, v1')
    a(f'v_and_b32 v{t2}, 1, v{t2}')
    a(f'v_lshlrev_b32 v{t2}, 5, v{t2}')
    a(f'v_add_u32 v{t1}, v{t1}, v{t2}')
    a(f'v_and_b32 v{t2}, 3, v1')
    a(f'v_lshlrev_b32 v{t2}, 3, v{t2}')
    a(f'v_add_u32 v{t1}, v{t1}, v{t2}')
    for dt in range(4):
        a(f'v_xor_b32 v{t2}, {dt}, v{t0}')
        a(f'v_lshlrev_b32 v{t2}, 6, v{t2}')
        a(f'v_add_u32 v{VA+dt}, v{t1}, v{t2}')
    for i in range(64):
        a(f'v_mov_b32 v{OA+i}, 0')
    a(f'v_mov_b32 v{M}, 0xf149f2ca')
    a(f'v_mov_b32 v{Lr}, 0')
    a(f's_mov_b32 s30, {f32hex(C_LOG2E_SCALE)}')
    a('s_lshl_b32 s29, s28, 11')
    def issue(t):
        sl = t & 3
        a(f's_mov_b32 s31, {t*16384}')
        a(f's_add_u32 m0, s29, {sl*16384}')
        a(f'buffer_load_dwordx4 v{DK0}, s[12:15], s31 offen lds')
        a(f'buffer_load_dwordx4 v{DK1}, s[12:15], s31 offen offset:1024 lds')
        a(f's_add_u32 m0, s29, {65536 + sl*16384}')
        a(f'buffer_load_dwordx4 v{DV}, s[16:19], s31 offen lds')
        a(f'buffer_load_dwordx4 v{DV}, s[16:19], s31 offen offset:1024 lds')
    a('s_waitcnt vmcnt(0)')
    for t in range(3):
        issue(t)
    for t in range(NT):
        sl = t & 3
        infl = min(2, NT-1-t)
        a(f's_waitcnt vmcnt({4*infl})')
        a('s_barrier')
        if t + 3 < NT:
            issue(t + 3)
        seq = [(T, ks) for T in range(2) for ks in range(8)]
        def kload(i):
            T, ks = seq[i]; b = KF + 4*(i & 3)
            a(f'ds_read_b128 v[{b}:{b+3}], v{KA+ks} offset:{sl*16384 + T*8192}')
        for i in range(3): kload(i)
        for i, (T, ks) in enumerate(seq):
            if i + 3 < 16:
                kload(i + 3); a('s_waitcnt lgkmcnt(3)')
            else:
                a(f's_waitcnt lgkmcnt({15 - i})')
            b = KF + 4*(i & 3)
            sreg = f'v[{SR+16*T}:{SR+16*T+15}]'
            if ks == 0:
                a(f'v_mfma_f32_32x32x16_bf16 {sreg}, v[{b}:{b+3}], v[{QF}:{QF+3}], 0')
            else:
                a(f'v_mfma_f32_32x32x16_bf16 {sreg}, v[{b}:{b+3}], v[{QF+4*ks}:{QF+4*ks+3}], {sreg}')
        a(f'v_max3_f32 v{t0}, v{SR}, v{SR+1}, v{SR+2}')
        for i in range(3, 31, 2):
            a(f'v_max3_f32 v{t0}, v{t0}, v{SR+i}, v{SR+i+1}')
        a(f'v_max_f32 v{t0}, v{t0}, v{SR+31}')
        a(f'v_mov_b32 v{t1}, v{t0}')
        a(f'v_permlane32_swap_b32 v{t0}, v{t1}')
        a(f'v_max_f32 v{t0}, v{t0}, v{t1}')
        a(f'v_max_f32 v{t0}, v{t0}, v{M}')
        a(f'v_sub_f32 v{t1}, v{M}, v{t0}')
        a(f'v_mul_f32 v{t1}, s30, v{t1}')
        a(f'v_exp_f32 v{AL}, v{t1}')
        a(f'v_mov_b32 v{M}, v{t0}')
        a(f'v_mul_f32 v{MC}, s30, v{t0}')
        for i in range(32):
            a(f'v_fma_f32 v{SR+i}, v{SR+i}, s30, -v{MC}')
            a(f'v_exp_f32 v{SR+i}, v{SR+i}')
        a(f'v_mul_f32 v{Lr}, v{Lr}, v{AL}')
        for i in range(32):
            a(f'v_add_f32 v{Lr}, v{Lr}, v{SR+i}')
        for i in range(64):
            a(f'v_mul_f32 v{OA+i}, v{OA+i}, v{AL}')
        for i in range(16):
            a(f'v_cvt_pk_bf16_f32 v{PP+i}, v{SR+2*i}, v{SR+2*i+1}')
        seq2 = [(u, dt) for u in range(4) for dt in range(4)]
        def vload(i):
            u, dt = seq2[i]; b = VF + 4*(i & 3)
            for jj in range(2):
                a(f'ds_read_b64_tr_b16 v[{b+2*jj}:{b+2*jj+1}], v{VA+dt} offset:{sl*16384 + (16*u + 8*jj)*256}')
        for i in range(3): vload(i)
        for i, (u, dt) in enumerate(seq2):
            if i + 3 < 16:
                vload(i + 3); a('s_waitcnt lgkmcnt(6)')
            else:
                a(f's_waitcnt lgkmcnt({2*(15 - i)})')
            b = VF + 4*(i & 3)
            o = f'v[{OA+16*dt}:{OA+16*dt+15}]'
            a(f'v_mfma_f32_32x32x16_bf16 {o}, v[{b}:{b+3}], v[{PP+4*u}:{PP+4*u+3}], {o}')
    a(f'v_mov_b32 v{t1}, v{Lr}')
    a(f'v_permlane32_swap_b32 v{Lr}, v{t1}')
    a(f'v_add_f32 v{Lr}, v{Lr}, v{t1}')
    a(f'v_rcp_f32 v{t0}, v{Lr}')
    a(f'v_lshrrev_b32 v{t1}, 5, v1')
    a(f'v_lshlrev_b32 v{t1}, 3, v{t1}')
    a(f'v_add_u32 v{t1}, v{ROWO}, v{t1}')
    for dt in range(4):
        for g in range(4):
            b = OA + 16*dt + 4*g
            for r in range(4):
                a(f'v_mul_f32 v{b+r}, v{b+r}, v{t0}')
            a(f'v_cvt_pk_bf16_f32 v{b}, v{b}, v{b+1}')
            a(f'v_cvt_pk_bf16_f32 v{b+1}, v{b+2}, v{b+3}')
            a(f'buffer_store_dwordx2 v[{b}:{b+1}], v{t1}, s[24:27], 0 offen offset:{64*dt + 16*g}')
    a('s_waitcnt vmcnt(0)')
    a.label(f'{name}_exit')
    a('s_endpgm')
    return 216, 131072

def main(outpath):
    hdr = open('concat_heads__mha_block_cached__mha_block_cached__near_ridge.s.ref').read().split('\n')
    head = []
    for line in hdr:
        if line.startswith('; @launch'):
            break
        head.append(line)
    a = Asm()
    g1 = dict(WM=4, WN=2, waves_m=2, waves_n=4, NK=10, stages=2, ldx=1280, ldw=8192, ldo=8192, out_f32=False, grid=256, setup=gemm1_setup)
    nv1, lds1 = gemm_kernel(a, 'gemm1_kernel', g1)
    nva, ldsa = attn_kernel(a, 'attn_kernel')
    g3 = dict(WM=1, WN=5, waves_m=8, waves_n=1, NK=16, stages=2, ldx=8192, ldw=1280, ldo=2560, out_f32=True, grid=256, setup=gemm3_setup)
    nv3, lds3 = gemm_kernel(a, 'gemm3_kernel', g3)
    nvr = reduce_kernel(a, 'reduce_kernel')
    body = a.finalize()
    txt = '\n'.join(head) + '\n'
    txt += f'; @launch kernel=gemm1_kernel grid=(256,1,1) block=(512,1,1) lds={lds1}\n'
    txt += f'; @launch kernel=attn_kernel grid=(512,1,1) block=(512,1,1) lds={ldsa}\n'
    txt += f'; @launch kernel=gemm3_kernel grid=(256,1,1) block=(512,1,1) lds={lds3}\n'
    txt += f'; @launch kernel=reduce_kernel grid=(1200,1,1) block=(256,1,1) lds=0\n'
    txt += '.amdgcn_target "amdgcn-amd-amdhsa--gfx950"\n.text\n'
    txt += body
    txt += '.section .rodata,"a"\n.p2align 6\n'
    txt += kernel_desc('gemm1_kernel', nv1) + '.p2align 6\n' + kernel_desc('attn_kernel', nva) + '.p2align 6\n' + kernel_desc('gemm3_kernel', nv3) + '.p2align 6\n' + kernel_desc('reduce_kernel', nvr)
    open(outpath, 'w').write(txt)
    print('written', outpath, 'vgprs', nv1, nva, nv3, nvr, 'lds', lds1, ldsa, lds3, 'nops', a.nops_added)

if __name__ == '__main__':
    main(sys.argv[1] if len(sys.argv) > 1 else 'concat_heads__mha_block_cached__mha_block_cached__near_ridge.s')
```

```python
import math
from gen import kernel_header, sel_ptr, srd, f32hex, QB, C_LOG2E_SCALE

def merge(a, mstream, vstream):
    nm = len(mstream); nv = len(vstream)
    vi = 0
    for i, grp in enumerate(mstream):
        for ins in grp: a(ins)
        tgt = (nv*(i+1))//nm
        while vi < tgt:
            a(vstream[vi]); vi += 1
    while vi < nv:
        a(vstream[vi]); vi += 1

def attn_kernel(a0, name, mode=''):
    class F:
        def __call__(self, text):
            t = text.strip()
            if 'M' in mode and t.startswith('v_mfma'): return
            if 'L' in mode and (t.startswith('ds_read') or t.startswith('s_waitcnt lgkmcnt')): return
            if 'V' in mode and (t.startswith('v_exp') or t.startswith('v_fma') or t.startswith('v_max3') or t.startswith('v_cvt_pk') or t.startswith('v_add_f32')): return
            a0(text)
        def label(self, n): a0.label(n)
        def raw(self, n): a0.raw(n)
    a = F()
    QF = 8; OA = 40; S0 = 104; S1 = 136; KF = 168; VF = 184; KA = 200; VA = 208
    DK0, DK1, DV = 212, 213, 214
    MU, Lr, MC, THR, AL = 215, 216, 217, 218, 219
    t0, t1, t2, t3 = 220, 221, 222, 223
    L2, L3, L4 = 224, 225, 226
    ROWO = 227
    NVG = 228
    TLAZY = 8.0 / C_LOG2E_SCALE
    kernel_header(a, name)
    a('s_cmp_ge_u32 s2, 256')
    a(f's_cbranch_scc1 {name}_exit')
    a('s_lshr_b32 s34, s2, 5')
    a('s_and_b32 s35, s2, 31')
    a('s_load_dwordx2 s[4:5], s[0:1], 8')
    a('s_load_dwordx2 s[6:7], s[0:1], 16')
    a('s_load_dwordx2 s[36:37], s[0:1], 48')
    a('s_load_dwordx2 s[38:39], s[0:1], 56')
    a('s_load_dwordx2 s[8:9], s[0:1], 96')
    a('s_waitcnt lgkmcnt(0)')
    a('s_lshl_b32 s40, s34, 5')
    a('s_add_u32 s40, s40, s35')
    a('s_lshl_b32 s40, s40, 18')
    srd(a, 12, 4, 's40', 262144)
    srd(a, 16, 6, 's40', 262144)
    srd(a, 44, 36, 's40', 262144)
    srd(a, 48, 38, 's40', 262144)
    a('s_lshl_b32 s40, s34, 21')
    a('s_lshl_b32 s41, s35, 16')
    a('s_add_u32 s40, s40, s41')
    srd(a, 20, 8, 's40', 65536)
    a(f's_add_u32 s41, s40, {QB}')
    srd(a, 24, 8, 's41', 65536)
    a(f's_add_u32 s40, s40, {8<<21}')
    srd(a, 52, 8, 's40', 65536)
    a(f's_add_u32 s41, s40, {QB}')
    srd(a, 56, 8, 's41', 65536)
    a('v_and_b32 v1, 63, v0')
    a('v_lshrrev_b32 v2, 6, v0')
    a('v_readfirstlane_b32 s28, v2')
    a('s_lshl_b32 s29, s28, 5')
    a(f'v_and_b32 v{t0}, 31, v1')
    a(f'v_add_u32 v{t0}, s29, v{t0}')
    a(f'v_cmp_gt_u32 vcc, 240, v{t0}')
    a(f'v_lshlrev_b32 v{t1}, 13, v{t0}')
    a(f'v_mov_b32 v{t2}, 0x80000000')
    a(f'v_cndmask_b32 v{ROWO}, v{t2}, v{t1}, vcc')
    a(f'v_min_u32 v{t0}, 239, v{t0}')
    a(f'v_lshlrev_b32 v{t0}, 13, v{t0}')
    a(f'v_lshrrev_b32 v{t1}, 5, v1')
    a(f'v_lshlrev_b32 v{t1}, 4, v{t1}')
    QOFF = 3
    a(f'v_lshlrev_b32 v{t0}, 4, v1')
    a('s_lshl_b32 s29, s28, 13')
    a(f'v_add_u32 v{QOFF}, s29, v{t0}')
    a(f'v_add_u32 v4, 0x1000, v{QOFF}')
    a(f'v_lshrrev_b32 v{t0}, 4, v1')
    a('s_lshl_b32 s29, s28, 3')
    a(f'v_add_u32 v{t1}, s29, v{t0}')
    for j, d in ((0, DK0), (1, DK1)):
        a(f'v_add_u32 v{t2}, {4*j}, v{t1}')
        a(f'v_xor_b32 v{t2}, v{t2}, v1')
        a(f'v_and_b32 v{t2}, 15, v{t2}')
        a(f'v_lshlrev_b32 v{t2}, 4, v{t2}')
        a(f'v_lshlrev_b32 v{t3}, 8, v{t1}')
        a(f'v_add_u32 v{d}, v{t3}, v{t2}')
    a(f'v_lshrrev_b32 v{t2}, 2, v1')
    a(f'v_xor_b32 v{t2}, v{t2}, v{t0}')
    a(f'v_and_b32 v{t2}, 3, v{t2}')
    a(f'v_lshlrev_b32 v{t2}, 6, v{t2}')
    a(f'v_and_b32 v{t3}, 3, v1')
    a(f'v_lshlrev_b32 v{t3}, 4, v{t3}')
    a(f'v_add_u32 v{t2}, v{t2}, v{t3}')
    a(f'v_lshlrev_b32 v{t3}, 8, v{t1}')
    a(f'v_add_u32 v{DV}, v{t3}, v{t2}')
    a(f'v_and_b32 v{t0}, 31, v1')
    a(f'v_lshlrev_b32 v{t0}, 8, v{t0}')
    a(f'v_lshrrev_b32 v{t1}, 5, v1')
    a(f'v_and_b32 v{t2}, 15, v1')
    a(f'v_xor_b32 v{t1}, v{t1}, v{t2}')
    for ks in range(8):
        a(f'v_xor_b32 v{t2}, {2*ks}, v{t1}')
        a(f'v_lshlrev_b32 v{t2}, 4, v{t2}')
        a(f'v_add_u32 v{KA+ks}, v{t0}, v{t2}')
    a(f'v_lshrrev_b32 v{t0}, 2, v1')
    a(f'v_and_b32 v{t0}, 3, v{t0}')
    a(f'v_lshrrev_b32 v{t1}, 5, v1')
    a(f'v_lshlrev_b32 v{t1}, 2, v{t1}')
    a(f'v_add_u32 v{t1}, v{t1}, v{t0}')
    a(f'v_lshlrev_b32 v{t1}, 8, v{t1}')
    a(f'v_add_u32 v{t1}, 0x10000, v{t1}')
    a(f'v_lshrrev_b32 v{t2}, 4, v1')
    a(f'v_and_b32 v{t2}, 1, v{t2}')
    a(f'v_lshlrev_b32 v{t2}, 5, v{t2}')
    a(f'v_add_u32 v{t1}, v{t1}, v{t2}')
    a(f'v_and_b32 v{t2}, 3, v1')
    a(f'v_lshlrev_b32 v{t2}, 3, v{t2}')
    a(f'v_add_u32 v{t1}, v{t1}, v{t2}')
    for dt in range(4):
        a(f'v_xor_b32 v{t2}, {dt}, v{t0}')
        a(f'v_lshlrev_b32 v{t2}, 6, v{t2}')
        a(f'v_add_u32 v{VA+dt}, v{t1}, v{t2}')
    a(f's_mov_b32 s30, {f32hex(C_LOG2E_SCALE)}')
    a('s_lshl_b32 s29, s28, 11')
    KS = ('s[12:15]', 's[44:47]'); VS = ('s[16:19]', 's[48:51]')
    QS = ('s[20:23]', 's[52:55]'); OS = ('s[24:27]', 's[56:59]')
    NG = 32
    vq = []
    def issueK(g):
        if 'C' in mode: return
        it, t = divmod(g, 16); sl = g & 3
        a(f's_mov_b32 s31, {t*16384}')
        a(f's_add_u32 m0, s29, {sl*16384}')
        a(f'buffer_load_dwordx4 v{DK0}, {KS[it]}, s31 offen lds')
        a(f'buffer_load_dwordx4 v{DK1}, {KS[it]}, s31 offen offset:1024 lds')
        vq.extend([('K', g)]*2)
    def issueV(g):
        if 'C' in mode: return
        it, t = divmod(g, 16); sl = g & 3
        a(f's_mov_b32 s31, {t*16384}')
        a(f's_add_u32 m0, s29, {65536 + sl*16384}')
        a(f'buffer_load_dwordx4 v{DV}, {VS[it]}, s31 offen lds')
        a(f'buffer_load_dwordx4 v{DV}, {VS[it]}, s31 offen offset:1024 lds')
        vq.extend([('V', g)]*2)
    def issueQ(it):
        for ks in range(8):
            a(f'buffer_load_dwordx4 v[{QF+4*ks}:{QF+4*ks+3}], v{QOFF if ks < 4 else 4}, {QS[it]}, 0 offen offset:{1024*(ks&3)}')
        vq.extend([('Q', it)]*8)
    def wait_for(tags):
        last = -1
        for i, tg in enumerate(vq):
            if tg in tags: last = i
        n = len(vq) - 1 - last
        a(f's_waitcnt vmcnt({n})')
        del vq[:last+1]
    def init_item():
        for i in range(64): a(f'v_mov_b32 v{OA+i}, 0')
        a(f'v_mov_b32 v{MU}, 0xf149f2ca')
        a(f'v_mov_b32 v{THR}, 0xf149f2ca')
        a(f'v_mov_b32 v{MC}, 0')
        for r in (Lr, L2, L3, L4): a(f'v_mov_b32 v{r}, 0')
    issueK(0); issueQ(0); issueK(1); issueV(0); issueK(2); issueV(1)
    init_item()
    def qk_stream(g, SN):
        sl = g & 3
        seq = [(T, ks) for T in range(2) for ks in range(8)]
        def kload(i):
            T, ks = seq[i]; b = KF + 4*(i & 3)
            return f'ds_read_b128 v[{b}:{b+3}], v{KA+ks} offset:{sl*16384 + T*8192}'
        groups = []
        pre = [kload(i) for i in range(3)]
        for i, (T, ks) in enumerate(seq):
            grp = list(pre) if i == 0 else []
            if i + 3 < 16:
                grp += [kload(i+3), 's_waitcnt lgkmcnt(3)']
            else:
                grp += [f's_waitcnt lgkmcnt({15-i})']
            b = KF + 4*(i & 3)
            sreg = f'v[{SN+16*T}:{SN+16*T+15}]'
            c = '0' if ks == 0 else sreg
            grp.append(f'v_mfma_f32_32x32x16_bf16 {sreg}, v[{b}:{b+3}], v[{QF+4*ks}:{QF+4*ks+3}], {c}')
            groups.append(grp)
        return groups
    def pv_stream(g, SC):
        sl = g & 3
        seq2 = [(u, dt) for u in range(4) for dt in range(4)]
        def vload(i):
            u, dt = seq2[i]; b = VF + 4*(i & 3)
            return [f'ds_read_b64_tr_b16 v[{b+2*jj}:{b+2*jj+1}], v{VA+dt} offset:{sl*16384 + (16*u + 8*jj)*256}' for jj in range(2)]
        groups = []
        for i, (u, dt) in enumerate(seq2):
            grp = []
            if i == 0:
                for k in range(3): grp += vload(k)
            if i + 3 < 16:
                grp += vload(i+3) + ['s_waitcnt lgkmcnt(6)']
            else:
                grp += [f's_waitcnt lgkmcnt({2*(15-i)})']
            b = VF + 4*(i & 3)
            o = f'v[{OA+16*dt}:{OA+16*dt+15}]'
            grp.append(f'v_mfma_f32_32x32x16_bf16 {o}, v[{b}:{b+3}], v[{SC+4*u}:{SC+4*u+3}], {o}')
            groups.append(grp)
        return groups
    def softmax_pre(SC, tag):
        v = [f'v_max3_f32 v{t0}, v{SC}, v{SC+1}, v{SC+2}']
        for i in range(3, 31, 2):
            v.append(f'v_max3_f32 v{t0}, v{t0}, v{SC+i}, v{SC+i+1}')
        v.append(f'v_max_f32 v{t0}, v{t0}, v{SC+31}')
        return v
    def softmax_exp(SC):
        v = []
        accs = (Lr, L2, L3, L4)
        for i in range(16):
            for e in (2*i, 2*i+1):
                v.append(f'v_fma_f32 v{SC+e}, v{SC+e}, s30, -v{MC}')
                v.append(f'v_exp_f32 v{SC+e}, v{SC+e}')
            if i > 0:
                for e in (2*i-2, 2*i-1):
                    acc = accs[e & 3]
                    v.append(f'v_add_f32 v{acc}, v{acc}, v{SC+e}')
                v.append(f'v_cvt_pk_bf16_f32 v{SC+i-1}, v{SC+2*i-2}, v{SC+2*i-1}')
        for e in (30, 31):
            acc = accs[e & 3]
            v.append(f'v_add_f32 v{acc}, v{acc}, v{SC+e}')
        v.append(f'v_cvt_pk_bf16_f32 v{SC+15}, v{SC+30}, v{SC+31}')
        return v
    def slow_path(tag):
        a.label(f'{name}_slow{tag}')
        a(f'v_mov_b32 v{t1}, v{t0}')
        a(f'v_permlane32_swap_b32 v{t0}, v{t1}')
        a(f'v_max_f32 v{t0}, v{t0}, v{t1}')
        a(f'v_max_f32 v{t0}, v{t0}, v{MU}')
        a(f'v_sub_f32 v{t1}, v{MU}, v{t0}')
        a(f'v_mul_f32 v{t1}, s30, v{t1}')
        a(f'v_exp_f32 v{AL}, v{t1}')
        a(f'v_mov_b32 v{MU}, v{t0}')
        a(f'v_mul_f32 v{MC}, s30, v{t0}')
        a(f'v_add_f32 v{THR}, {f32hex(TLAZY)}, v{t0}')
        for r in (Lr, L2, L3, L4): a(f'v_mul_f32 v{r}, v{r}, v{AL}')
        for i in range(64): a(f'v_mul_f32 v{OA+i}, v{OA+i}, v{AL}')
        a(f's_branch {name}_back{tag}')
    def epilogue(it):
        a(f'v_add_f32 v{Lr}, v{Lr}, v{L2}')
        a(f'v_add_f32 v{L3}, v{L3}, v{L4}')
        a(f'v_add_f32 v{Lr}, v{Lr}, v{L3}')
        a(f'v_mov_b32 v{t1}, v{Lr}')
        a(f'v_permlane32_swap_b32 v{Lr}, v{t1}')
        a(f'v_add_f32 v{Lr}, v{Lr}, v{t1}')
        a(f'v_rcp_f32 v{t0}, v{Lr}')
        for dt in range(4):
            for gp in range(2):
                b = OA + 16*dt + 8*gp
                for r in range(8):
                    a(f'v_mul_f32 v{b+r}, v{b+r}, v{t0}')
                for k in range(4):
                    a(f'v_cvt_pk_bf16_f32 v{b+k}, v{b+2*k}, v{b+2*k+1}')
                a(f'v_permlane32_swap_b32 v{b}, v{b+2}')
                a(f'v_permlane32_swap_b32 v{b+1}, v{b+3}')
                ks = 2*dt + gp
                a(f'buffer_store_dwordx4 v[{b}:{b+3}], v{QOFF if ks < 4 else 4}, {OS[it]}, 0 offen offset:{1024*(ks&3)}')
                vq.append(('ST', 0))
    slow_tags = []
    SB = (S0, S1)
    for i in range(4):
        a(f's_mov_b32 s{60+i}, s{12+i}')
        a(f's_mov_b32 s{64+i}, s{16+i}')
    a('s_mov_b32 s68, 0x%x' % (3*16384))
    a('s_mov_b32 s69, 0x%x' % (2*16384))
    def dmaK(slot):
        if 'C' in mode: return
        a(f's_add_u32 m0, s29, {slot*16384}')
        a(f'buffer_load_dwordx4 v{DK0}, s[60:63], s68 offen lds')
        a(f'buffer_load_dwordx4 v{DK1}, s[60:63], s68 offen offset:1024 lds')
        a('s_add_u32 s68, s68, 16384')
    def dmaV(slot):
        if 'C' in mode: return
        a(f's_add_u32 m0, s29, {65536 + slot*16384}')
        a(f'buffer_load_dwordx4 v{DV}, s[64:67], s69 offen lds')
        a(f'buffer_load_dwordx4 v{DV}, s[64:67], s69 offen offset:1024 lds')
        a('s_add_u32 s69, s69, 16384')
    a('s_waitcnt vmcnt(10)')
    a('s_waitcnt vmcnt(8)')
    a('s_barrier')
    dmaK(3); dmaV(2)
    if 'D' not in mode:
        for grp in qk_stream(0, SB[0]):
            for x in grp: a(x)
    a('s_mov_b32 s70, 0')
    a.label(f'{name}_loop')
    for j in range(4):
        s = 1 + j
        if j >= 0:
            tailcnt = [8, 6, 2, 0][j]
            if j == 3:
                a('s_cmp_eq_u32 s70, 3')
                a(f's_cbranch_scc1 {name}_w{j}q')
            a('s_cmp_eq_u32 s70, 7')
            a(f's_cbranch_scc1 {name}_w{j}t')
            a('s_waitcnt vmcnt(8)')
            a(f's_branch {name}_w{j}d')
            if j == 3:
                a.label(f'{name}_w{j}q')
                a('s_waitcnt vmcnt(4)')
                a(f's_branch {name}_w{j}d')
            a.label(f'{name}_w{j}t')
            a(f's_waitcnt vmcnt({tailcnt})')
            a.label(f'{name}_w{j}d')
        if 'N' not in mode: a('s_barrier')
        if j in (0, 1):
            a('s_cmp_eq_u32 s70, 3')
            a(f's_cbranch_scc0 {name}_ns{j}')
            base, w, so = ((44, 60, 68), (48, 64, 69))[j]
            for i in range(4): a(f's_mov_b32 s{w+i}, s{base+i}')
            a(f's_mov_b32 s{so}, 0')
            a.label(f'{name}_ns{j}')
        def dma_block():
            a('s_cmp_eq_u32 s70, 7')
            a(f's_cbranch_scc1 {name}_nd{j}')
            dmaK(j); dmaV((j+3) & 3)
            if j == 0:
                a(f's_branch {name}_nd{j}b')
                a.label(f'{name}_nd{j}')
                dmaV((j+3) & 3)
                a.label(f'{name}_nd{j}b')
            else:
                a.label(f'{name}_nd{j}')
        if j != 2: dma_block()
        if 'D' in mode:
            if j == 2: dma_block()
            continue
        SN = SB[s & 1]; SC = SB[(s+1) & 1]
        mq = qk_stream(s, SN)
        pre = softmax_pre(SC, s)
        ex = softmax_exp(SC)
        g1, g2 = mq[:3], mq[3:]
        if j == 3:
            a('s_cmp_eq_u32 s70, 7')
            a(f's_cbranch_scc1 {name}_noqk')
        merge(a, g1, pre)
        a(f'v_cmp_gt_f32 vcc, v{t0}, v{THR}')
        a(f's_cbranch_vccnz {name}_slow{s}')
        a.label(f'{name}_back{s}')
        slow_tags.append(s)
        merge(a, g2, ex)
        if j == 3:
            a(f's_branch {name}_qkdone')
            a.label(f'{name}_noqk')
            for x in pre: a(x)
            a(f'v_cmp_gt_f32 vcc, v{t0}, v{THR}')
            a(f's_cbranch_vccnz {name}_slow{s}b')
            a.label(f'{name}_back{s}b')
            slow_tags.append(f'{s}b')
            for x in ex: a(x)
            a.label(f'{name}_qkdone')
        if j == 2:
            a('s_cmp_eq_u32 s70, 3')
            a(f's_cbranch_scc0 {name}_nq')
            for ks in range(8):
                a(f'buffer_load_dwordx4 v[{QF+4*ks}:{QF+4*ks+3}], v{QOFF if ks < 4 else 4}, s[52:55], 0 offen offset:{1024*(ks&3)}')
            a.label(f'{name}_nq')
            dma_block()
        for grp in pv_stream(s-1, SC):
            for x in grp: a(x)
        if j == 3:
            a('s_and_b32 s71, s70, 3')
            a('s_cmp_eq_u32 s71, 3')
            a(f's_cbranch_scc0 {name}_ne')
            a('s_cmp_eq_u32 s70, 7')
            a(f's_cbranch_scc1 {name}_e1')
            epilogue(0)
            init_item()
            a(f's_branch {name}_ne')
            a.label(f'{name}_e1')
            epilogue(1)
            a.label(f'{name}_ne')
    a('s_add_u32 s70, s70, 1')
    a('s_cmp_lt_u32 s70, 8')
    a(f's_cbranch_scc1 {name}_loop')
    a('s_waitcnt vmcnt(0)')
    a(f's_branch {name}_exit')
    for tg in slow_tags: slow_path(tg)
    a.label(f'{name}_exit')
    a('s_endpgm')
    return NVG, 131072
```

```python
import sys, math, os
sys.path.insert(0, 'gen')
from asmlib import Asm

QB = 2*8*256*4096*2
OB = QB
PBASE = QB + OB
C_LOG2E_SCALE = (128 ** -0.5) * math.log2(math.e)

def f32hex(x):
    import struct
    return '0x%08x' % struct.unpack('<I', struct.pack('<f', x))[0]

def kernel_header(a, name):
    a.raw(f'.globl {name}')
    a.raw('.p2align 8')
    a.raw(f'.type {name},@function')
    a.label(name)

def kernel_desc(name, vgprs, lds=0):
    acc = ((vgprs + 3)//4)*4
    return f'''.amdhsa_kernel {name}
  .amdhsa_next_free_vgpr {vgprs}
  .amdhsa_next_free_sgpr 102
  .amdhsa_accum_offset {acc}
  .amdhsa_group_segment_fixed_size 0
  .amdhsa_kernarg_size 104
  .amdhsa_user_sgpr_count 2
  .amdhsa_user_sgpr_kernarg_segment_ptr 1
  .amdhsa_system_sgpr_workgroup_id_x 1
.end_amdhsa_kernel
'''

def gemm_kernel(a0, name, cfg):
    gmode = os.environ.get('GMODE', '')
    class F:
        def __call__(self, text):
            t = text.strip()
            if 'S' in gmode and t.startswith('buffer_store'): return
            if 'M' in gmode and (t.startswith('v_mfma') or t.startswith('ds_read') or t.startswith('s_waitcnt lgkmcnt')): return
            if 'X' in gmode and t.endswith('lds'): return
            a0(text)
        def label(self, n): a0.label(n)
        def raw(self, n): a0.raw(n)
    a = F()
    WM, WN, WVM, WVN = cfg['WM'], cfg['WN'], cfg['waves_m'], cfg['waves_n']
    assert WVM*WVN == 8 and WVM*WM*32 == 256
    BN = 32*WN*WVN
    BK = 64
    NK = cfg['NK']
    S = cfg['stages']
    ldx, ldw, ldo = cfg['ldx'], cfg['ldw'], cfg['ldo']
    out_f32 = cfg['out_f32']
    RB = BN*2
    swz = (RB % 256 == 0)
    XB = 256*BK*2
    NX = XB//1024//8
    NW = -(-(BK*RB)//(1024*8))
    WBP = NW*8*1024
    STAGE = XB + WBP
    L = NX + NW
    lds_total = S*STAGE
    ACC = 16
    nacc = 16*WM*WN
    FB0 = ACC + nacc
    fsz = 4*WM + 4*WN
    FB1 = FB0 + fsz
    XA = FB1 + fsz
    WA = XA + 4*S
    XV = WA + WN*S
    WV = XV + NX
    OV = WV + NW
    T = OV + WM
    nv = T + 12
    assert nv <= 256, nv
    def acc(mt, nt): b = ACC + 16*(mt*WN + nt); return f'v[{b}:{b+15}]'
    def bfr(s, mt): b = (FB0, FB1)[s] + 4*mt; return b
    def afr(s, nt): b = (FB0, FB1)[s] + 4*WM + 4*nt; return b

    kernel_header(a, name)
    a(f's_cmp_ge_u32 s2, {cfg["grid"]}')
    a(f's_cbranch_scc1 {name}_exit')
    cfg['setup'](a)
    a('v_and_b32 v1, 63, v0')
    a('v_lshrrev_b32 v2, 6, v0')
    a('v_readfirstlane_b32 s24, v2')
    a(f's_lshr_b32 s25, s24, {int(math.log2(WVN))}')
    a(f's_and_b32 s26, s24, {WVN-1}')
    t0, t1, t2 = T, T+1, T+2
    if cfg.get('xfrag'):
        for j in range(NX):
            a(f'v_lshlrev_b32 v{t0}, 4, v1')
            a(f's_lshl_b32 s27, s24, 13')
            a(f'v_add_u32 v{t0}, s27, v{t0}')
            a(f'v_add_u32 v{XV+j}, {1024*j}, v{t0}')
    for j in range(0 if cfg.get('xfrag') else NX):
        a(f's_mul_i32 s27, s24, {NX*8}')
        a(f'v_lshrrev_b32 v{t0}, 3, v1')
        a(f'v_add_u32 v{t0}, s27, v{t0}')
        a(f'v_add_u32 v{t0}, {8*j}, v{t0}')
        a(f'v_lshrrev_b32 v{t1}, 1, v{t0}')
        a(f'v_xor_b32 v{t1}, v{t1}, v1')
        a(f'v_and_b32 v{t1}, 7, v{t1}')
        a(f'v_min_u32 v{t0}, 239, v{t0}')
        a(f's_movk_i32 s27, {ldx}') if ldx < 32768 else a(f's_mov_b32 s27, {ldx}')
        a(f'v_mul_lo_u32 v{t0}, v{t0}, s27')
        a(f'v_lshlrev_b32 v{t1}, 4, v{t1}')
        a(f'v_add_u32 v{XV+j}, v{t0}, v{t1}')
    for j in range(NW):
        a(f's_mul_i32 s27, s24, {NW*1024}')
        a(f'v_lshlrev_b32 v{t0}, 4, v1')
        a(f'v_add_u32 v{t0}, s27, v{t0}')
        a(f'v_add_u32 v{t0}, {1024*j}, v{t0}')
        if RB & (RB-1) == 0:
            sh = int(math.log2(RB))
            a(f'v_lshrrev_b32 v{t1}, {sh}, v{t0}')
            a(f'v_and_b32 v{t2}, {RB-1}, v{t0}')
        else:
            assert RB == 320
            a('s_mov_b32 s27, 52429')
            a(f'v_mul_lo_u32 v{t1}, v{t0}, s27')
            a(f'v_lshrrev_b32 v{t1}, 24, v{t1}')
            a(f's_movk_i32 s27, {RB}')
            a(f'v_mul_lo_u32 v{t2}, v{t1}, s27')
            a(f'v_sub_u32 v{t2}, v{t0}, v{t2}')
        if swz:
            a(f'v_and_b32 v{t0}, 3, v{t1}')
            a(f'v_lshlrev_b32 v{t0}, 6, v{t0}')
            a(f'v_xor_b32 v{t2}, v{t2}, v{t0}')
        a(f'v_min_u32 v{t1}, {BK-1}, v{t1}')
        a(f's_movk_i32 s27, {ldw}')
        a(f'v_mul_lo_u32 v{t1}, v{t1}, s27')
        a(f'v_add_u32 v{WV+j}, v{t1}, v{t2}')
    a(f'v_and_b32 v{t0}, 31, v1')
    a(f's_mul_i32 s27, s25, {WM*32}')
    a(f'v_add_u32 v{t0}, s27, v{t0}')
    a(f'v_lshrrev_b32 v{t1}, 1, v{t0}')
    a(f'v_and_b32 v{t1}, 7, v{t1}')
    a(f'v_lshrrev_b32 v{t2}, 5, v1')
    a(f'v_xor_b32 v{t1}, v{t1}, v{t2}')
    a(f'v_lshlrev_b32 v{t0}, 7, v{t0}')
    for ks in range(4):
        a(f'v_xor_b32 v{t2}, {2*ks}, v{t1}')
        a(f'v_lshlrev_b32 v{t2}, 4, v{t2}')
        a(f'v_add_u32 v{XA+ks}, v{t0}, v{t2}')
        if cfg.get('xfrag'):
            a(f'v_lshlrev_b32 v{t2}, 4, v1')
            a(f's_lshl_b32 s27, s24, 12')
            a(f'v_add_u32 v{t2}, s27, v{t2}')
            a(f'v_add_u32 v{XA+ks}, {1024*ks}, v{t2}')
        for st in range(1, S):
            a(f'v_add_u32 v{XA+4*st+ks}, {st*STAGE}, v{XA+ks}')
    a(f'v_lshrrev_b32 v{t0}, 2, v1')
    a(f'v_and_b32 v{t0}, 3, v{t0}')
    a(f'v_lshrrev_b32 v{t1}, 5, v1')
    a(f'v_lshlrev_b32 v{t1}, 3, v{t1}')
    a(f'v_add_u32 v{t1}, v{t1}, v{t0}')
    a(f's_movk_i32 s27, {RB}')
    a(f'v_mul_lo_u32 v{t1}, v{t1}, s27')
    a(f'v_add_u32 v{t1}, {XB}, v{t1}')
    a(f'v_lshrrev_b32 v{t2}, 4, v1')
    a(f'v_and_b32 v{t2}, 1, v{t2}')
    a(f'v_lshlrev_b32 v{t2}, 5, v{t2}')
    a(f'v_add_u32 v{t1}, v{t1}, v{t2}')
    a(f'v_and_b32 v{t2}, 3, v1')
    a(f'v_lshlrev_b32 v{t2}, 3, v{t2}')
    a(f'v_add_u32 v{t1}, v{t1}, v{t2}')
    a(f's_mul_i32 s27, s26, {WN}')
    for nt in range(WN):
        a(f's_add_u32 s28, s27, {nt}')
        if swz:
            a(f'v_xor_b32 v{t2}, s28, v{t0}')
        else:
            a(f'v_mov_b32 v{t2}, s28')
        a(f'v_lshlrev_b32 v{t2}, 6, v{t2}')
        a(f'v_add_u32 v{WA+nt}, v{t1}, v{t2}')
        for st in range(1, S):
            a(f'v_add_u32 v{WA+WN*st+nt}, {st*STAGE}, v{WA+nt}')
    for mt in range(WM):
        a(f'v_and_b32 v{t0}, 31, v1')
        a(f's_mul_i32 s27, s25, {WM*32}')
        a(f's_add_u32 s27, s27, {32*mt}')
        a(f'v_add_u32 v{t0}, s27, v{t0}')
        a(f's_mov_b32 s27, {ldo}')
        a(f'v_mul_lo_u32 v{t1}, v{t0}, s27')
        a(f'v_cmp_gt_u32 vcc, 240, v{t0}')
        a(f'v_mov_b32 v{t2}, 0x80000000')
        a(f'v_cndmask_b32 v{OV+mt}, v{t2}, v{t1}, vcc')
    for i in range(nacc):
        a(f'v_mov_b32 v{ACC+i}, 0')
    a(f's_mul_i32 s29, s24, {NX*1024}')
    a(f's_mul_i32 s30, s24, {NW*1024}')
    a(f's_add_u32 s30, s30, {XB}')
    a('s_mov_b32 s31, 0')
    a('s_mov_b32 s32, 0')
    def issue(stage_idx):
        sb = (stage_idx % S)*STAGE
        for j in range(NX):
            a(f's_add_u32 m0, s29, {sb + 1024*j}')
            a(f'buffer_load_dwordx4 v{XV+j}, s[12:15], s31 offen lds')
        for j in range(NW):
            a(f's_add_u32 m0, s30, {sb + 1024*j}')
            a(f'buffer_load_dwordx4 v{WV+j}, s[16:19], s32 offen lds')
        if cfg.get('xfrag'):
            a(f's_add_u32 s31, s31, {4096 if stage_idx % 2 == 0 else 65536-4096}')
        else:
            a(f's_add_u32 s31, s31, {BK*2}')
        a(f's_add_u32 s32, s32, {BK*ldw}')
    for st in range(min(S-1, NK)):
        issue(st)
    def load_frags(s, sb, ks):
        for mt in range(WM):
            b = bfr(s, mt)
            a(f'ds_read_b128 v[{b}:{b+3}], v{XA+4*sb+ks} offset:{mt*32*128}')
        for nt in range(WN):
            b = afr(s, nt)
            for jj in range(2):
                a(f'ds_read_b64_tr_b16 v[{b+2*jj}:{b+2*jj+1}], v{WA+WN*sb+nt} offset:{(16*ks + 4*jj)*RB}')
    nfl = WM + 2*WN
    for it in range(NK):
        infl = min(S-2, NK-1-it)
        a(f's_waitcnt vmcnt({infl*L})')
        a('s_barrier')
        if it + S - 1 < NK:
            issue(it + S - 1)
        sb = it % S
        load_frags(0, sb, 0)
        for ks in range(4):
            s = ks & 1
            if ks + 1 < 4:
                load_frags(s ^ 1, sb, ks + 1)
                a(f's_waitcnt lgkmcnt({nfl})')
            else:
                a('s_waitcnt lgkmcnt(0)')
            for mt in range(WM):
                for nt in range(WN):
                    fa = afr(s, nt); fb = bfr(s, mt)
                    a(f'v_mfma_f32_32x32x16_bf16 {acc(mt,nt)}, v[{fa}:{fa+3}], v[{fb}:{fb+3}], {acc(mt,nt)}')
    a(f'v_lshlrev_b32 v{t0}, 4, v1')
    if out_f32:
        a(f's_mul_i32 s27, s24, {80*1024}')
        for nt in range(WN):
            b = ACC + 16*nt
            for g in range(4):
                a(f's_add_u32 s28, s27, {(nt*4+g)*1024}')
                a(f'buffer_store_dwordx4 v[{b+4*g}:{b+4*g+3}], v{t0}, s[20:23], s28 offen')
    else:
        a('s_lshr_b32 s27, s26, 1')
        a('s_lshl_b32 s27, s27, 6')
        a('s_lshl_b32 s28, s25, 5')
        a('s_add_u32 s27, s27, s28')
        a('s_and_b32 s28, s26, 1')
        a('s_lshl_b32 s28, s28, 2')
        a('s_add_u32 s27, s27, s28')
        a('s_lshl_b32 s27, s27, 10')
        for mt in range(WM):
            for nt in range(WN):
                b = ACC + 16*(mt*WN + nt)
                for gp in range(2):
                    r = b + 8*gp
                    for k in range(4):
                        a(f'v_cvt_pk_bf16_f32 v{r+k}, v{r+2*k}, v{r+2*k+1}')
                    a(f'v_permlane32_swap_b32 v{r}, v{r+2}')
                    a(f'v_permlane32_swap_b32 v{r+1}, v{r+3}')
                    a(f's_add_u32 s28, s27, {(mt*8+2*nt+gp)*1024}')
                    a(f'buffer_store_dwordx4 v[{r}:{r+3}], v{t0}, s[20:23], s28 offen')
    a('s_waitcnt vmcnt(0)')
    a.label(f'{name}_exit')
    a('s_endpgm')
    return nv, lds_total

def sel_ptr(a, dst, offA, offB, cond_sgpr):
    a(f's_load_dwordx2 s[{dst}:{dst+1}], s[0:1], {offA}')
    a(f's_load_dwordx2 s[40:41], s[0:1], {offB}')
    a('s_waitcnt lgkmcnt(0)')
    a(f's_cmp_lg_u32 {cond_sgpr}, 0')
    a(f's_cselect_b32 s{dst}, s40, s{dst}')
    a(f's_cselect_b32 s{dst+1}, s41, s{dst+1}')

def srd(a, d, base, add_sgpr_or_imm, nrec):
    a(f's_add_u32 s{d}, s{base}, {add_sgpr_or_imm}')
    a(f's_addc_u32 s{d+1}, s{base+1}, 0')
    a(f's_mov_b32 s{d+2}, {nrec}')
    a(f's_mov_b32 s{d+3}, 0x00020000')

def gemm1_setup(a):
    a('s_lshr_b32 s33, s2, 7')
    a('s_lshr_b32 s34, s2, 4')
    a('s_and_b32 s34, s34, 7')
    a('s_and_b32 s35, s2, 15')
    sel_ptr(a, 4, 0, 40, 's33')
    sel_ptr(a, 6, 24, 64, 's33')
    a('s_load_dwordx2 s[8:9], s[0:1], 96')
    a('s_waitcnt lgkmcnt(0)')
    a('s_mul_i32 s36, s34, 307200')
    srd(a, 12, 4, 's36', 307200)
    a('s_lshl_b32 s36, s35, 9')
    srd(a, 16, 6, 's36', 640*8192 - 15*512)
    a('s_lshl_b32 s36, s33, 3')
    a('s_add_u32 s36, s36, s34')
    a('s_lshl_b32 s36, s36, 21')
    a('s_lshl_b32 s37, s35, 17')
    a('s_add_u32 s36, s36, s37')
    srd(a, 20, 8, 's36', 131072)

def gemm3_setup(a):
    a('s_lshr_b32 s33, s2, 7')
    a('s_lshr_b32 s34, s2, 4')
    a('s_and_b32 s34, s34, 7')
    a('s_lshr_b32 s35, s2, 2')
    a('s_and_b32 s35, s35, 3')
    a('s_and_b32 s38, s2, 3')
    sel_ptr(a, 6, 32, 72, 's33')
    a('s_load_dwordx2 s[8:9], s[0:1], 96')
    a('s_waitcnt lgkmcnt(0)')
    a('s_lshl_b32 s36, s33, 3')
    a('s_add_u32 s36, s36, s34')
    a('s_lshl_b32 s37, s36, 21')
    a(f's_add_u32 s37, s37, {QB}')
    a('s_lshl_b32 s39, s38, 19')
    a('s_add_u32 s37, s37, s39')
    srd(a, 12, 8, 's37', 524288)
    a(f's_mul_i32 s37, s38, {1024*1280}')
    a('s_mul_i32 s39, s35, 320')
    a('s_add_u32 s37, s37, s39')
    srd(a, 16, 6, 's37', 4096*1280 - 3*1024*1280 - 3*320)
    a('s_lshl_b32 s37, s38, 4')
    a('s_add_u32 s37, s37, s36')
    a(f's_mul_i32 s37, s37, {256*2560}')
    a(f's_add_u32 s37, s37, {PBASE}')
    a(f's_mul_i32 s39, s35, {20*1024}')
    a('s_add_u32 s37, s37, s39')
    srd(a, 20, 8, 's37', 256*2560 - 3*20*1024)

def reduce_kernel(a, name):
    kernel_header(a, name)
    a('s_cmp_ge_u32 s2, 1280')
    a(f's_cbranch_scc1 {name}_exit')
    a('s_load_dwordx2 s[4:5], s[0:1], 96')
    a('s_load_dwordx2 s[6:7], s[0:1], 80')
    a('s_waitcnt lgkmcnt(0)')
    srd(a, 8, 4, PBASE, 4*16*256*2560)
    srd(a, 12, 6, 0, 1920*2560)
    a('v_and_b32 v1, 63, v0')
    a('v_lshrrev_b32 v2, 6, v0')
    a('v_readfirstlane_b32 s16, v2')
    a('s_lshl_b32 s17, s2, 2')
    a('s_add_u32 s17, s17, s16')
    a('v_lshlrev_b32 v2, 4, v1')
    a('s_lshl_b32 s18, s17, 11')
    for ks in range(4):
        a(f's_add_u32 s19, s18, {ks*16*256*2560}')
        a(f'buffer_load_dwordx4 v[{8+8*ks}:{11+8*ks}], v2, s[8:11], s19 offen')
        a(f'buffer_load_dwordx4 v[{12+8*ks}:{15+8*ks}], v2, s[8:11], s19 offen offset:1024')
    a('s_and_b32 s20, s17, 1')
    a('s_lshr_b32 s21, s17, 1')
    a('s_mov_b32 s22, 0xcccccccd')
    a('s_mul_hi_u32 s23, s21, s22')
    a('s_lshr_b32 s23, s23, 4')
    a('s_mul_i32 s24, s23, 20')
    a('s_sub_u32 s24, s21, s24')
    a('s_and_b32 s25, s23, 7')
    a('s_lshr_b32 s26, s23, 3')
    a('s_and_b32 s27, s26, 7')
    a('s_lshr_b32 s26, s26, 3')
    a('s_lshl_b32 s25, s25, 5')
    a('v_and_b32 v3, 31, v1')
    a('v_add_u32 v3, s25, v3')
    a('v_cmp_gt_u32 vcc, 240, v3')
    a('s_mul_i32 s27, s27, 240')
    a('v_add_u32 v3, s27, v3')
    a('v_mul_u32_u24 v3, 2560, v3')
    a('s_mul_i32 s26, s26, 1280')
    a('s_lshl_b32 s24, s24, 6')
    a('s_add_u32 s26, s26, s24')
    a('s_lshl_b32 s20, s20, 5')
    a('s_add_u32 s26, s26, s20')
    a('v_lshrrev_b32 v4, 5, v1')
    a('v_lshlrev_b32 v4, 4, v4')
    a('v_add_u32 v3, v3, v4')
    a('v_add_u32 v3, s26, v3')
    a('v_mov_b32 v4, 0x80000000')
    a('v_cndmask_b32 v5, v4, v3, vcc')
    a('s_waitcnt vmcnt(0)')
    for i in range(8):
        a(f'v_add_f32 v{8+i}, v{8+i}, v{16+i}')
        a(f'v_add_f32 v{24+i}, v{24+i}, v{32+i}')
        a(f'v_add_f32 v{8+i}, v{8+i}, v{24+i}')
    for i in range(4):
        a(f'v_cvt_pk_bf16_f32 v{40+i}, v{8+2*i}, v{9+2*i}')
    a('v_permlane32_swap_b32 v40, v42')
    a('v_permlane32_swap_b32 v41, v43')
    a('buffer_store_dwordx4 v[40:43], v5, s[12:15], 0 offen')
    a('s_waitcnt vmcnt(0)')
    a.label(f'{name}_exit')
    a('s_endpgm')
    return 48

def attn_kernel(a, name, mode=""):
    QF = 8; OA = 40; SR = 104; PP = 136; KF = 152; VF = 168; KA = 184; VA = 192
    DK0, DK1, DV = 196, 197, 198
    M, Lr, T0 = 200, 201, 202
    t0, t1, t2, t3 = T0, T0+1, T0+2, T0+3
    MC, AL = 208, 209
    ROWO = 210
    NT = 16
    kernel_header(a, name)
    a('s_cmp_ge_u32 s2, 512')
    a(f's_cbranch_scc1 {name}_exit')
    a('s_lshr_b32 s33, s2, 8')
    a('s_lshr_b32 s34, s2, 5')
    a('s_and_b32 s34, s34, 7')
    a('s_and_b32 s35, s2, 31')
    sel_ptr(a, 4, 8, 48, 's33')
    sel_ptr(a, 6, 16, 56, 's33')
    a('s_load_dwordx2 s[8:9], s[0:1], 96')
    a('s_waitcnt lgkmcnt(0)')
    a('s_lshl_b32 s36, s34, 5')
    a('s_add_u32 s36, s36, s35')
    a('s_lshl_b32 s36, s36, 18')
    srd(a, 12, 4, 's36', 262144)
    srd(a, 16, 6, 's36', 262144)
    a('s_lshl_b32 s36, s33, 3')
    a('s_add_u32 s36, s36, s34')
    a(f's_mul_i32 s36, s36, {240*8192}')
    a('s_lshl_b32 s37, s35, 8')
    a('s_add_u32 s36, s36, s37')
    srd(a, 20, 8, 's36', 240*8192 - 31*256)
    a(f's_add_u32 s36, s36, {QB}')
    srd(a, 24, 8, 's36', 240*8192 - 31*256)
    a('v_and_b32 v1, 63, v0')
    a('v_lshrrev_b32 v2, 6, v0')
    a('v_readfirstlane_b32 s28, v2')
    a('s_lshl_b32 s29, s28, 5')
    a(f'v_and_b32 v{t0}, 31, v1')
    a(f'v_add_u32 v{t0}, s29, v{t0}')
    a(f'v_cmp_gt_u32 vcc, 240, v{t0}')
    a(f'v_lshlrev_b32 v{t1}, 13, v{t0}')
    a(f'v_mov_b32 v{t2}, 0x80000000')
    a(f'v_cndmask_b32 v{ROWO}, v{t2}, v{t1}, vcc')
    a(f'v_min_u32 v{t0}, 239, v{t0}')
    a(f'v_lshlrev_b32 v{t0}, 13, v{t0}')
    a(f'v_lshrrev_b32 v{t1}, 5, v1')
    a(f'v_lshlrev_b32 v{t1}, 4, v{t1}')
    a(f'v_add_u32 v{t0}, v{t0}, v{t1}')
    for ks in range(8):
        a(f'buffer_load_dwordx4 v[{QF+4*ks}:{QF+4*ks+3}], v{t0}, s[20:23], 0 offen offset:{32*ks}')
    a(f'v_lshrrev_b32 v{t0}, 4, v1')
    a('s_lshl_b32 s29, s28, 3')
    a(f'v_add_u32 v{t1}, s29, v{t0}')
    for j, d in ((0, DK0), (1, DK1)):
        a(f'v_add_u32 v{t2}, {4*j}, v{t1}')
        a(f'v_xor_b32 v{t2}, v{t2}, v1')
        a(f'v_and_b32 v{t2}, 15, v{t2}')
        a(f'v_lshlrev_b32 v{t2}, 4, v{t2}')
        a(f'v_lshlrev_b32 v{t3}, 8, v{t1}')
        a(f'v_add_u32 v{d}, v{t3}, v{t2}')
    a(f'v_lshrrev_b32 v{t2}, 2, v1')
    a(f'v_xor_b32 v{t2}, v{t2}, v{t0}')
    a(f'v_and_b32 v{t2}, 3, v{t2}')
    a(f'v_lshlrev_b32 v{t2}, 6, v{t2}')
    a(f'v_and_b32 v{t3}, 3, v1')
    a(f'v_lshlrev_b32 v{t3}, 4, v{t3}')
    a(f'v_add_u32 v{t2}, v{t2}, v{t3}')
    a(f'v_lshlrev_b32 v{t3}, 8, v{t1}')
    a(f'v_add_u32 v{DV}, v{t3}, v{t2}')
    a(f'v_and_b32 v{t0}, 31, v1')
    a(f'v_lshlrev_b32 v{t0}, 8, v{t0}')
    a(f'v_lshrrev_b32 v{t1}, 5, v1')
    a(f'v_and_b32 v{t2}, 15, v1')
    a(f'v_xor_b32 v{t1}, v{t1}, v{t2}')
    for ks in range(8):
        a(f'v_xor_b32 v{t2}, {2*ks}, v{t1}')
        a(f'v_lshlrev_b32 v{t2}, 4, v{t2}')
        a(f'v_add_u32 v{KA+ks}, v{t0}, v{t2}')
    a(f'v_lshrrev_b32 v{t0}, 2, v1')
    a(f'v_and_b32 v{t0}, 3, v{t0}')
    a(f'v_lshrrev_b32 v{t1}, 5, v1')
    a(f'v_lshlrev_b32 v{t1}, 2, v{t1}')
    a(f'v_add_u32 v{t1}, v{t1}, v{t0}')
    a(f'v_lshlrev_b32 v{t1}, 8, v{t1}')
    a(f'v_add_u32 v{t1}, 0x10000, v{t1}')
    a(f'v_lshrrev_b32 v{t2}, 4, v1')
    a(f'v_and_b32 v{t2}, 1, v{t2}')
    a(f'v_lshlrev_b32 v{t2}, 5, v{t2}')
    a(f'v_add_u32 v{t1}, v{t1}, v{t2}')
    a(f'v_and_b32 v{t2}, 3, v1')
    a(f'v_lshlrev_b32 v{t2}, 3, v{t2}')
    a(f'v_add_u32 v{t1}, v{t1}, v{t2}')
    for dt in range(4):
        a(f'v_xor_b32 v{t2}, {dt}, v{t0}')
        a(f'v_lshlrev_b32 v{t2}, 6, v{t2}')
        a(f'v_add_u32 v{VA+dt}, v{t1}, v{t2}')
    for i in range(64):
        a(f'v_mov_b32 v{OA+i}, 0')
    a(f'v_mov_b32 v{M}, 0xf149f2ca')
    a(f'v_mov_b32 v{Lr}, 0')
    a(f's_mov_b32 s30, {f32hex(C_LOG2E_SCALE)}')
    a('s_lshl_b32 s29, s28, 11')
    def issue(t):
        sl = t & 3
        a(f's_mov_b32 s31, {t*16384}')
        a(f's_add_u32 m0, s29, {sl*16384}')
        a(f'buffer_load_dwordx4 v{DK0}, s[12:15], s31 offen lds')
        a(f'buffer_load_dwordx4 v{DK1}, s[12:15], s31 offen offset:1024 lds')
        a(f's_add_u32 m0, s29, {65536 + sl*16384}')
        a(f'buffer_load_dwordx4 v{DV}, s[16:19], s31 offen lds')
        a(f'buffer_load_dwordx4 v{DV}, s[16:19], s31 offen offset:1024 lds')
    a('s_waitcnt vmcnt(0)')
    for t in range(3):
        issue(t)
    for t in range(NT):
        sl = t & 3
        infl = min(2, NT-1-t)
        a(f's_waitcnt vmcnt({4*infl})')
        a('s_barrier')
        if t + 3 < NT:
            issue(t + 3)
        if 'D' in mode: continue
        seq = [(T, ks) for T in range(2) for ks in range(8)]
        def kload(i):
            T, ks = seq[i]; b = KF + 4*(i & 3)
            a(f'ds_read_b128 v[{b}:{b+3}], v{KA+ks} offset:{sl*16384 + T*8192}')
        for i in range(3): kload(i)
        for i, (T, ks) in enumerate(seq):
            if i + 3 < 16:
                kload(i + 3); a('s_waitcnt lgkmcnt(3)')
            else:
                a(f's_waitcnt lgkmcnt({15 - i})')
            b = KF + 4*(i & 3)
            sreg = f'v[{SR+16*T}:{SR+16*T+15}]'
            if 'M' in mode: pass
            elif ks == 0:
                a(f'v_mfma_f32_32x32x16_bf16 {sreg}, v[{b}:{b+3}], v[{QF}:{QF+3}], 0')
            else:
                a(f'v_mfma_f32_32x32x16_bf16 {sreg}, v[{b}:{b+3}], v[{QF+4*ks}:{QF+4*ks+3}], {sreg}')
        a(f'v_max3_f32 v{t0}, v{SR}, v{SR+1}, v{SR+2}')
        for i in range(3, 31, 2):
            a(f'v_max3_f32 v{t0}, v{t0}, v{SR+i}, v{SR+i+1}')
        a(f'v_max_f32 v{t0}, v{t0}, v{SR+31}')
        a(f'v_mov_b32 v{t1}, v{t0}')
        a(f'v_permlane32_swap_b32 v{t0}, v{t1}')
        a(f'v_max_f32 v{t0}, v{t0}, v{t1}')
        a(f'v_max_f32 v{t0}, v{t0}, v{M}')
        a(f'v_sub_f32 v{t1}, v{M}, v{t0}')
        a(f'v_mul_f32 v{t1}, s30, v{t1}')
        a(f'v_exp_f32 v{AL}, v{t1}')
        a(f'v_mov_b32 v{M}, v{t0}')
        a(f'v_mul_f32 v{MC}, s30, v{t0}')
        for i in range(32):
            a(f'v_fma_f32 v{SR+i}, v{SR+i}, s30, -v{MC}')
            if 'B' not in mode: a(f'v_exp_f32 v{SR+i}, v{SR+i}')
        a(f'v_mul_f32 v{Lr}, v{Lr}, v{AL}')
        for i in range(32):
            a(f'v_add_f32 v{Lr}, v{Lr}, v{SR+i}')
        for i in range(64):
            if 'A' in mode: break
            a(f'v_mul_f32 v{OA+i}, v{OA+i}, v{AL}')
        for i in range(16):
            a(f'v_cvt_pk_bf16_f32 v{PP+i}, v{SR+2*i}, v{SR+2*i+1}')
        seq2 = [(u, dt) for u in range(4) for dt in range(4)]
        def vload(i):
            u, dt = seq2[i]; b = VF + 4*(i & 3)
            for jj in range(2):
                a(f'ds_read_b64_tr_b16 v[{b+2*jj}:{b+2*jj+1}], v{VA+dt} offset:{sl*16384 + (16*u + 8*jj)*256}')
        for i in range(3): vload(i)
        for i, (u, dt) in enumerate(seq2):
            if i + 3 < 16:
                vload(i + 3); a('s_waitcnt lgkmcnt(6)')
            else:
                a(f's_waitcnt lgkmcnt({2*(15 - i)})')
            b = VF + 4*(i & 3)
            o = f'v[{OA+16*dt}:{OA+16*dt+15}]'
            if 'M' not in mode: a(f'v_mfma_f32_32x32x16_bf16 {o}, v[{b}:{b+3}], v[{PP+4*u}:{PP+4*u+3}], {o}')
    a(f'v_mov_b32 v{t1}, v{Lr}')
    a(f'v_permlane32_swap_b32 v{Lr}, v{t1}')
    a(f'v_add_f32 v{Lr}, v{Lr}, v{t1}')
    a(f'v_rcp_f32 v{t0}, v{Lr}')
    a(f'v_lshrrev_b32 v{t1}, 5, v1')
    a(f'v_lshlrev_b32 v{t1}, 3, v{t1}')
    a(f'v_add_u32 v{t1}, v{ROWO}, v{t1}')
    for dt in range(4):
        for g in range(4):
            b = OA + 16*dt + 4*g
            for r in range(4):
                a(f'v_mul_f32 v{b+r}, v{b+r}, v{t0}')
            a(f'v_cvt_pk_bf16_f32 v{b}, v{b}, v{b+1}')
            a(f'v_cvt_pk_bf16_f32 v{b+1}, v{b+2}, v{b+3}')
            a(f'buffer_store_dwordx2 v[{b}:{b+1}], v{t1}, s[24:27], 0 offen offset:{64*dt + 16*g}')
    a('s_waitcnt vmcnt(0)')
    a.label(f'{name}_exit')
    a('s_endpgm')
    return 216, 131072

def main(outpath):
    hdr = open('concat_heads__mha_block_cached__mha_block_cached__near_ridge.s.ref').read().split('\n')
    head = []
    for line in hdr:
        if line.startswith('; @launch'):
            break
        head.append(line)
    a = Asm()
    g1 = dict(WM=4, WN=2, waves_m=2, waves_n=4, NK=10, stages=2, ldx=1280, ldw=8192, ldo=8192, out_f32=False, grid=256, setup=gemm1_setup)
    nv1, lds1 = gemm_kernel(a, 'gemm1_kernel', g1)
    if os.environ.get('ATTN', '2') == '2':
        import attn2
        nva, ldsa = attn2.attn_kernel(a, 'attn_kernel', mode=os.environ.get('AMODE', ''))
        agrid = 256
    else:
        nva, ldsa = attn_kernel(a, 'attn_kernel', mode=os.environ.get('AMODE', ''))
        agrid = 512
    g3 = dict(WM=1, WN=5, waves_m=8, waves_n=1, NK=16, stages=2, ldx=8192, ldw=1280, ldo=2560, out_f32=True, xfrag=True, grid=256, setup=gemm3_setup)
    nv3, lds3 = gemm_kernel(a, 'gemm3_kernel', g3)
    nvr = reduce_kernel(a, 'reduce_kernel')
    body = a.finalize()
    txt = '\n'.join(head) + '\n'
    txt += f'; @launch kernel=gemm1_kernel grid=(256,1,1) block=(512,1,1) lds={lds1}\n'
    txt += f'; @launch kernel=attn_kernel grid=({agrid},1,1) block=(512,1,1) lds={ldsa}\n'
    txt += f'; @launch kernel=gemm3_kernel grid=(256,1,1) block=(512,1,1) lds={lds3}\n'
    txt += f'; @launch kernel=reduce_kernel grid=(1280,1,1) block=(256,1,1) lds=0\n'
    txt += '.amdgcn_target "amdgcn-amd-amdhsa--gfx950"\n.text\n'
    txt += body
    txt += '.section .rodata,"a"\n.p2align 6\n'
    txt += kernel_desc('gemm1_kernel', nv1) + '.p2align 6\n' + kernel_desc('attn_kernel', nva) + '.p2align 6\n' + kernel_desc('gemm3_kernel', nv3) + '.p2align 6\n' + kernel_desc('reduce_kernel', nvr)
    open(outpath, 'w').write(txt)
    print('written', outpath, 'vgprs', nv1, nva, nv3, nvr, 'lds', lds1, ldsa, lds3, 'nops', a.nops_added)

if __name__ == '__main__':
    main(sys.argv[1] if len(sys.argv) > 1 else 'concat_heads__mha_block_cached__mha_block_cached__near_ridge.s')
```
